```python
import torch

def _softmax(x, axis=-1):
    return torch.softmax(x, dim=axis)
def _gelu(x):
    return torch.nn.functional.gelu(x, approximate="tanh")
def _silu(x):
    return torch.nn.functional.silu(x)
def _sigmoid(x):
    return torch.sigmoid(x)
def _layernorm(x, axis=-1, eps=1e-5):
    m = x.mean(dim=axis, keepdim=True)
    v = x.var(dim=axis, keepdim=True, unbiased=False)
    return (x - m) / torch.sqrt(v + eps)
def _scatter_add(tgt, idx, src, axis=0):
    return tgt.clone().index_add_(axis, idx, src)
def _segment_sum(src, seg, n):
    out = torch.zeros((n,) + src.shape[1:], dtype=src.dtype)
    return out.index_add_(0, seg, src)
def _pad(x, pw):
    flat = tuple(v for pair in reversed(pw) for v in pair)
    return torch.nn.functional.pad(x, flat)

kernel_name = 'gated_mix__gqa_block_cached__glu_gated_swiglu__decode'

def setup_inputs():

    _w = (lambda a: (lambda t: t.to(torch.bfloat16) if t.is_floating_point() else t)(torch.as_tensor(a)))
    def _A_setup():
        B, Sq, D = 2, 1, 448
        Hq, Hkv, Sk, Dh = 16, 8, 32768, 256
        assert Hq % Hkv == 0, (Hq, Hkv)
        return {
            "x": _w((lambda *s: torch.randn(*s, dtype=torch.bfloat16) * 0.05)(B, Sq, D)),
            "k_cache": _w((lambda *s: torch.randn(*s, dtype=torch.bfloat16) * 3.2)(B, Hkv, Sk, Dh)),
            "v_cache": _w((lambda *s: torch.randn(*s, dtype=torch.bfloat16) * 0.05)(B, Hkv, Sk, Dh)),
            "wq": _w((lambda *s: torch.randn(*s, dtype=torch.bfloat16) * 3.2)(D, Hq * Dh) * (D ** -0.5)),
            "wo": _w((lambda *s: torch.randn(*s, dtype=torch.bfloat16) * 0.05)(Hq * Dh, D) * ((Hq * Dh) ** -0.5)),
        }
    _A_in = _A_setup()

    def _B_setup():
        B, S, D, F = 2, 1, 448, 1792
        return {
            "x": _w((lambda *s: torch.randn(*s, dtype=torch.bfloat16) * 0.05)(B, S, D)),
            "w1": _w((lambda *s: torch.randn(*s, dtype=torch.bfloat16) * 0.1)(D, F) * (2.0 / D) ** 0.5),
            "w3": _w((lambda *s: torch.randn(*s, dtype=torch.bfloat16) * 0.1)(D, F) * (2.0 / D) ** 0.5),
            "w2": _w((lambda *s: torch.randn(*s, dtype=torch.bfloat16) * 0.1)(F, D) * (2.0 / F) ** 0.5),
        }
    _B_in = _B_setup()

    return {
        "A_x": _A_in["x"],
        "A_k_cache": _A_in["k_cache"],
        "A_v_cache": _A_in["v_cache"],
        "A_wq": _A_in["wq"],
        "A_wo": _A_in["wo"],
        "B_x": _B_in["x"],
        "B_w1": _B_in["w1"],
        "B_w3": _B_in["w3"],
        "B_w2": _B_in["w2"],
        "gate_w": _w((lambda *s: torch.randn(*s, dtype=torch.bfloat16) * 0.05)(448) * 16.0),
    }

def reference(A_x, A_k_cache, A_v_cache, A_wq, A_wo, B_x, B_w1, B_w3, B_w2, gate_w):
    def _A_ref(x, k_cache, v_cache, wq, wo):
        B, Sq, D = x.shape
        Hq, Dh = 16, 256
        Hkv = k_cache.shape[1]
        rep = Hq // Hkv
        q = (lambda x, *d: x.permute(*d))((x @ wq).reshape(B, Sq, Hq, Dh), 0, 2, 1, 3)
        k = (lambda x, n, axis: torch.repeat_interleave(x, n, dim=axis))(k_cache, rep, axis=1)
        v = (lambda x, n, axis: torch.repeat_interleave(x, n, dim=axis))(v_cache, rep, axis=1)
        scores = torch.einsum("bhqd,bhkd->bhqk", q, k) * (Dh ** -0.5)
        p = _softmax(scores, axis=-1)
        o = torch.einsum("bhqk,bhkd->bhqd", p, v)
        return (lambda x, *d: x.permute(*d))(o, 0, 2, 1, 3).reshape(B, Sq, Hq * Dh) @ wo

    def _B_ref(x, w1, w3, w2):
        gate = torch.einsum("bsd,df->bsf", x, w1)
        up = torch.einsum("bsd,df->bsf", x, w3)
        h = _silu(gate) * up
        out = torch.einsum("bsf,fd->bsd", h, w2)
        return out

    x = A_x
    g = _sigmoid((x * gate_w).sum(-1, keepdims=True))
    a = _A_ref(x, A_k_cache, A_v_cache, A_wq, A_wo)
    b = _B_ref(x, B_w1, B_w3, B_w2)
    return g * a + (1 - g) * b
```

```python
import sys, math, struct

KNAME = "gated_mix__gqa_block_cached__glu_gated_swiglu__decode_kernel"

HEADER = """; Kernarg layout for this problem (104 bytes, ptrs only, base s[0:1]):
;   offset  96: d_ws      1073741824 bytes workspace (unspecified values whenever your kernel or launch list starts; a list's later launches find what earlier ones wrote)
"""

L_SC = 0x0000
L_Q = 0x4000
L_TAG = 0x4400
L_F = 0x4420
L_ST = 0x4480
L_X = 0x4800
L_PART = 0x5000
L_WQ = 0x7000
L_W1 = 0xA800
L_W3 = 0xC400
L_W2 = 0xE000
L_WO = 0x10000
LDS_BYTES = 0x17000

W_EPOCH = 0
W_Q = 0x1000
W_ST = 0x10000
W_H1 = 0x100000
W_H2 = 0x200000
W_BP = 0x300000
WS_USED = 0x400000

def f2u(f):
    return struct.unpack("<I", struct.pack("<f", f))[0]

LOG2E = 1.4426950408889634

class G:
    def __init__(self, **p):
        self.L = []
        self.p = dict(pace=10, stamps=False, round_scores=True, spin=0x40000, kflags="nt", vflags="nt",
                      mapping="x128")
        self.p.update(p)
        self.nlab = 0
        self.nstamp = 0

    def A(self, s):
        self.L.append("    " + s)

    def lab(self, name):
        self.L.append(name + ":")

    def newlab(self, base):
        self.nlab += 1
        return f"L_{base}{self.nlab}"

    def nop(self, n):
        if n > 0:
            self.A(f"s_nop {n-1}")

    def stamp(self, k):
        if self.p["stamps"]:
            self.A(f"s_memrealtime s[{80+2*k}:{81+2*k}]")

    def write_stamps(self):
        if not self.p["stamps"]:
            return
        A = self.A
        self.stamp(7)
        A("s_mov_b64 exec, -1")
        A("s_mul_i32 s68, s2, 5")
        A("s_add_u32 s68, s68, s3")
        A("s_lshl_b32 s69, s68, 4")
        A("s_add_u32 s69, s69, 0x20000000")
        A("s_lshl_b32 s68, s68, 7")
        A("s_add_u32 s68, s68, 0x21000000")
        A("s_waitcnt vmcnt(0) lgkmcnt(0)")
        A("v_mov_b32 v12, s69")
        A("v_mov_b32 v13, s68")
        for i in range(16):
            A(f"v_mov_b32 v{16+i}, s{80+i}")
        A("v_mov_b32 v32, s80"); A("v_mov_b32 v33, s81"); A("v_mov_b32 v34, s94"); A("v_mov_b32 v35, s95")
        A("s_mov_b64 exec, 1")
        A("global_store_dwordx4 v12, v[32:35], s[28:29]")
        for i in range(4):
            A(f"global_store_dwordx4 v13, v[{16+4*i}:{19+4*i}], s[28:29] offset:{16*i}")
        A("s_waitcnt vmcnt(0)")

    def row_allreduce(self, op, regs, steps=(8, 4, 2, 1)):
        A = self.A
        self.nop(2)
        for st in steps:
            for r in regs:
                A(f"{op}_dpp v{r}, v{r}, v{r} row_ror:{st} row_mask:0xf bank_mask:0xf")
            if len(regs) < 3:
                self.nop(3 - len(regs))

    def swap_allreduce(self, op, regs, tmps, which):
        A = self.A
        for r, t in zip(regs, tmps):
            A(f"v_mov_b32 v{t}, v{r}")
        self.nop(2)
        for r, t in zip(regs, tmps):
            A(f"v_permlane{which}_swap_b32 v{r}, v{t}")
        self.nop(1)
        for r, t in zip(regs, tmps):
            A(f"{op} v{r}, v{r}, v{t}")

    def round_bf16(self, r, t=None):
        A = self.A
        A(f"v_cvt_pk_bf16_f32 v{r}, v{r}, v{r}")
        A(f"v_and_b32 v{r}, s62, v{r}")

    def reduce7(self, v, z):
        A = self.A
        A(f"v_mov_b32 v{z}, 0")
        w = list(v) + [z]
        self.nop(2)
        for i in range(4):
            A(f"v_permlane32_swap_b32 v{w[i]}, v{w[i+4]}")
        self.nop(1)
        for i in range(4):
            A(f"v_add_f32 v{w[i]}, v{w[i]}, v{w[i+4]}")
        self.nop(2)
        for i in range(2):
            A(f"v_permlane16_swap_b32 v{w[i]}, v{w[i+2]}")
        self.nop(1)
        for i in range(2):
            A(f"v_add_f32 v{w[i]}, v{w[i]}, v{w[i+2]}")
        self.nop(2)
        A(f"v_add_f32_dpp v{w[0]}, v{w[0]}, v{w[0]} row_ror:8 row_mask:0xf bank_mask:0x3")
        A(f"v_add_f32_dpp v{w[0]}, v{w[1]}, v{w[1]} row_ror:8 row_mask:0xf bank_mask:0xc")
        self.nop(2)
        A(f"v_add_f32_dpp v{w[0]}, v{w[0]}, v{w[0]} row_half_mirror row_mask:0xf bank_mask:0xf")
        self.nop(2)
        A(f"v_add_f32_dpp v{w[0]}, v{w[0]}, v{w[0]} quad_perm:[1,0,3,2] row_mask:0xf bank_mask:0xf")
        self.nop(2)
        A(f"v_add_f32_dpp v{w[0]}, v{w[0]}, v{w[0]} quad_perm:[2,3,0,1] row_mask:0xf bank_mask:0xf")

    def srd(self, d, lo, hi, nbytes):
        A = self.A
        A(f"s_mov_b32 s{d}, {lo}")
        A(f"s_mov_b32 s{d+1}, {hi}")
        A(f"s_mov_b32 s{d+2}, {nbytes:#x}")
        A(f"s_mov_b32 s{d+3}, 0x00020000")

    def poll(self, loads, groups, tmp, sleep=0):
        A = self.A
        lp = self.newlab("poll")
        done = self.newlab("pdone")
        A(f"s_mov_b32 s70, {self.p['spin']:#x}")
        self.lab(lp)
        for l in loads:
            A(l)
        A("s_waitcnt vmcnt(0)")
        first = True
        for gi, g in enumerate(groups):
            mask = None
            if isinstance(g, tuple):
                g, mask = g
            regs = list(g)
            t = tmp + gi
            if len(regs) == 3:
                A(f"v_bitop3_b32 v{t}, v{regs[0]}, v{regs[1]}, v{regs[2]} bitop3:0x96")
            else:
                A(f"v_bitop3_b32 v{t}, v{regs[0]}, v{regs[1]}, v{regs[2]} bitop3:0x96")
                rest = regs[3:]
                while len(rest) >= 2:
                    A(f"v_bitop3_b32 v{t}, v{t}, v{rest[0]}, v{rest[1]} bitop3:0x96")
                    rest = rest[2:]
                if rest:
                    A(f"v_xor_b32 v{t}, v{t}, v{rest[0]}")
            dst = "s[72:73]" if first else "s[74:75]"
            A(f"v_cmp_ne_u32_e64 {dst}, s58, v{t}")
            if mask is not None:
                A(f"s_and_b64 {dst}, {dst}, {mask}")
            if not first:
                A("s_or_b64 s[72:73], s[72:73], s[74:75]")
            first = False
        A("s_cmp_eq_u64 s[72:73], 0")
        A(f"s_cbranch_scc1 {done}")
        if sleep:
            A(f"s_sleep {sleep}")
        A("s_sub_u32 s70, s70, 1")
        A("s_cmp_lg_u32 s70, 0")
        A(f"s_cbranch_scc1 {lp}")
        self.lab(done)

    def gen(self):
        A = self.A
        p = self.p
        L = self.L
        L.append(HEADER + f"; @launch grid=(256,1,1) block=(320,1,1) lds={LDS_BYTES}")
        L.append('.amdgcn_target "amdgcn-amd-amdhsa--gfx950"')
        L.append(".text")
        L.append(f".globl {KNAME}")
        L.append(".p2align 8")
        L.append(f".type {KNAME},@function")
        self.lab(KNAME)
        A("s_cmp_ge_u32 s2, 256")
        A("s_cbranch_scc1 L_end")
        A("s_load_dwordx16 s[4:19], s[0:1], 0")
        A("s_load_dwordx8 s[20:27], s[0:1], 64")
        A("s_load_dwordx2 s[28:29], s[0:1], 96")
        self.stamp(0)
        A("v_lshrrev_b32 v1, 6, v0")
        A("v_and_b32 v0, 63, v0")
        A("v_readfirstlane_b32 s3, v1")
        if p["mapping"] == "x128":
            A("s_and_b32 s52, s2, 127")
            A("s_lshr_b32 s53, s2, 7")
        elif p["mapping"] == "x128b":
            A("s_and_b32 s52, s2, 7")
            A("s_lshl_b32 s52, s52, 4")
            A("s_bfe_u32 s53, s2, 0x40003")
            A("s_add_u32 s52, s52, s53")
            A("s_lshr_b32 s53, s2, 7")
        A("s_lshr_b32 s54, s52, 3")
        A("s_and_b32 s55, s52, 7")
        A("s_lshl_b32 s55, s55, 1")
        A("s_add_u32 s55, s55, s53")
        A("s_lshr_b32 s56, s54, 3")
        A("s_and_b32 s57, s54, 7")
        A("s_mov_b32 s62, 0xffff0000")
        A("s_cmp_eq_u32 s3, 4")
        A("s_cbranch_scc1 L_helper")
        self.stream()
        self.lab("L_helper")
        self.helper()
        self.lab("L_end")
        A("s_endpgm")
        L.append('.section .rodata,"a"')
        L.append(".p2align 6")
        L.append(f".amdhsa_kernel {KNAME}")
        L.append("  .amdhsa_next_free_vgpr 256")
        L.append("  .amdhsa_next_free_sgpr 102")
        L.append("  .amdhsa_accum_offset 256")
        L.append("  .amdhsa_group_segment_fixed_size 0")
        L.append("  .amdhsa_kernarg_size 104")
        L.append("  .amdhsa_user_sgpr_count 2")
        L.append("  .amdhsa_user_sgpr_kernarg_segment_ptr 1")
        L.append("  .amdhsa_system_sgpr_workgroup_id_x 1")
        L.append("  .amdhsa_float_denorm_mode_32 3")
        L.append(".end_amdhsa_kernel")
        return "\n".join(L) + "\n"

    def ring(self, rp, s, j):
        return 128 + ((rp * 2 + s) * 4 + j) * 4

    def ld(self, rp, s, j, flags):
        r = self.ring(rp, s, j)
        sb = "s61" if s else "s60"
        self.A(f"buffer_load_dwordx4 v[{r}:{r+3}], v3, s[32:35], {sb} offen offset:{j*128} {flags}")

    def stream(self):
        A = self.A
        p = self.p
        A("v_and_b32 v12, 15, v0")
        A("v_lshrrev_b32 v13, 4, v0")
        A("v_lshrrev_b32 v14, 1, v12")
        A("v_lshlrev_b32 v1, 9, v14")
        A("v_and_b32 v15, 1, v12")
        A("v_lshl_or_b32 v1, v15, 6, v1")
        A("v_lshl_or_b32 v1, v13, 4, v1")
        A("v_mov_b32 v3, v1")
        A("s_lshl_b32 s66, s53, 2")
        A("s_add_u32 s66, s66, s3")
        A("s_lshl_b32 s66, s66, 13")
        A("s_lshl_b32 s67, s52, 21")
        A("s_mov_b32 s60, s66")
        A("s_mov_b32 s34, 0x200000")
        A("s_mov_b32 s35, 0x00020000")
        A("s_waitcnt lgkmcnt(0)")
        A("s_add_u32 s32, s6, s67")
        A("s_addc_u32 s33, s7, 0")
        n = 0
        pre = []
        for rp in range(4):
            A("s_add_u32 s61, s60, 4096")
            for s in range(2):
                for j in range(4):
                    if n >= p["pace"]:
                        A(f"s_waitcnt vmcnt({p['pace']-1})")
                    self.ld(rp, s, j, p["kflags"])
                    n += 1
                    if n == p["pace"]:
                        self.stream_setup()
            A("s_add_u32 s60, s60, 0x10000")
        self.stamp(1)
        A("s_barrier")
        for j in range(4):
            A(f"ds_read_b128 v[{16+4*j}:{19+4*j}], v12 offset:{j*128}")
        A(f"ds_read_b32 v13, v13")
        A("s_mov_b32 s59, 0")
        A("s_waitcnt lgkmcnt(0)")
        A("v_readfirstlane_b32 s58, v13")
        self.stamp(2)
        self.lab("L_kloop")
        A("s_cmp_lg_u32 s59, 7")
        A("s_cbranch_scc1 L_knosw")
        A("s_add_u32 s32, s8, s67")
        A("s_addc_u32 s33, s9, 0")
        A("s_mov_b32 s60, s66")
        A("v_mov_b32 v3, v2")
        self.lab("L_knosw")
        for rp in range(4):
            A("s_add_u32 s61, s60, 4096")
            for s in range(2):
                d = 32 + 4 * s
                for j in range(4):
                    r = self.ring(rp, s, j)
                    A("s_waitcnt vmcnt(31)")
                    c = "0" if j == 0 else f"v[{d}:{d+3}]"
                    A(f"v_mfma_f32_16x16x32_bf16 v[{d}:{d+3}], v[{16+4*j}:{19+4*j}], v[{r}:{r+3}], {c}")
                    self.ld(rp, s, j, p["kflags"])
                self.nop(8)
                t = 40 + 2 * s
                A(f"v_add_f32_dpp v{t}, v{d+1}, v{d} quad_perm:[1,1,3,3] row_mask:0xf bank_mask:0xf")
                A(f"v_add_f32_dpp v{t+1}, v{d+3}, v{d+2} quad_perm:[1,1,3,3] row_mask:0xf bank_mask:0xf")
                if s == 1:
                    A("s_mov_b64 exec, 0x5555")
                    A(f"ds_write_b128 v4, v[40:43] offset:{rp*128}")
                    A("s_mov_b64 exec, -1")
            A("s_add_u32 s60, s60, 0x10000")
        A("v_add_u32 v4, 512, v4")
        A("s_add_u32 s59, s59, 1")
        A("s_cmp_lt_u32 s59, 8")
        A("s_cbranch_scc1 L_kloop")
        self.stamp(3)
        S = 64
        A("s_waitcnt lgkmcnt(0)")
        for i in range(4):
            A(f"ds_read_b128 v[{S+4*i}:{S+4*i+3}], v14 offset:{i*1024}")
        A(f"s_mov_b32 s63, {f2u(LOG2E/16):#x}")
        A("s_waitcnt lgkmcnt(0)")
        if p["round_scores"]:
            for i in range(8):
                a, b = S + 2 * i, S + 2 * i + 1
                A(f"v_cvt_pk_bf16_f32 v{b}, v{a}, v{b}")
                A(f"v_lshlrev_b32 v{a}, 16, v{b}")
                A(f"v_and_b32 v{b}, s62, v{b}")
        m = [84, 86]
        for h in range(2):
            A(f"v_max3_f32 v{m[h]}, v{S+h}, v{S+2+h}, v{S+4+h}")
            A(f"v_max3_f32 v{m[h]}, v{m[h]}, v{S+6+h}, v{S+8+h}")
            A(f"v_max3_f32 v{m[h]}, v{m[h]}, v{S+10+h}, v{S+12+h}")
            A(f"v_max_f32 v{m[h]}, v{m[h]}, v{S+14+h}")
        self.row_allreduce("v_max_f32", m)
        self.swap_allreduce("v_max_f32", m, [88, 89], 16)
        self.swap_allreduce("v_max_f32", m, [88, 89], 32)
        for h in range(2):
            A(f"v_mul_f32 v{m[h]}, s63, v{m[h]}")
        for i in range(16):
            A(f"v_fma_f32 v{S+i}, v{S+i}, s63, -v{m[i&1]}")
        for i in range(16):
            A(f"v_exp_f32 v{S+i}, v{S+i}")
        l = [85, 87]
        self.nop(1)
        for i in range(4):
            A(f"ds_write_b128 v14, v[{S+4*i}:{S+4*i+3}] offset:{i*1024}")
        for h in range(2):
            A(f"v_add_f32 v{l[h]}, v{S+h}, v{S+2+h}")
            for i in range(2, 8):
                A(f"v_add_f32 v{l[h]}, v{l[h]}, v{S+2*i+h}")
        self.row_allreduce("v_add_f32", l)
        self.swap_allreduce("v_add_f32", l, [88, 89], 16)
        self.swap_allreduce("v_add_f32", l, [88, 89], 32)
        A("s_mov_b64 exec, 1")
        A("ds_write_b128 v15, v[84:87]")
        A("s_mov_b64 exec, -1")
        A("s_waitcnt lgkmcnt(0)")
        A("ds_read_b128 v[44:47], v5")
        A("s_barrier")
        for i in range(64):
            A(f"v_mov_b32 v{64+i}, 0")
        A("s_mov_b32 s59, 0")
        self.stamp(4)
        def vbody(last):
            n = 0
            for rp in range(4):
                P = 44 + 4 * (rp & 1)
                Pn = 44 + 4 * ((rp + 1) & 1)
                if not last:
                    A("s_add_u32 s61, s60, 4096")
                A("s_waitcnt lgkmcnt(0)")
                if not (last and rp == 3):
                    A(f"ds_read_b128 v[{Pn}:{Pn+3}], v5 offset:{(rp+1)*128}")
                for s in range(2):
                    for j in range(4):
                        r = self.ring(rp, s, j)
                        A(f"s_waitcnt vmcnt({31 - n if last else 31})")
                        n += 1
                        for d in range(4):
                            A(f"v_lshlrev_b32 v{52+2*d}, 16, v{r+d}")
                            A(f"v_and_b32 v{53+2*d}, s62, v{r+d}")
                        if not last:
                            self.ld(rp, s, j, p["vflags"])
                        for h in range(2):
                            for d in range(4):
                                a = 64 + j * 16 + h * 8 + 2 * d
                                A(f"v_pk_fma_f32 v[{a}:{a+1}], v[{52+2*d}:{53+2*d}], v[{P+2*s}:{P+2*s+1}], v[{a}:{a+1}] op_sel:[0,{h},0] op_sel_hi:[1,{h},1]")
                if not last:
                    A("s_add_u32 s60, s60, 0x10000")
        self.lab("L_vloop")
        vbody(False)
        A("v_add_u32 v5, 512, v5")
        A("s_add_u32 s59, s59, 1")
        A("s_cmp_lt_u32 s59, 7")
        A("s_cbranch_scc1 L_vloop")
        vbody(True)
        self.stamp(5)
        acc = lambda j, h, e: 64 + j * 16 + h * 8 + e
        self.nop(2)
        prs = [(acc(j, h, e), acc(j + 2, h, e)) for j in range(2) for h in range(2) for e in range(8)]
        for a, b in prs:
            A(f"v_permlane32_swap_b32 v{a}, v{b}")
        for a, b in prs:
            A(f"v_add_f32 v{a}, v{a}, v{b}")
        prs = [(acc(0, h, e), acc(1, h, e)) for h in range(2) for e in range(8)]
        self.nop(2)
        for a, b in prs:
            A(f"v_permlane16_swap_b32 v{a}, v{b}")
        for a, b in prs:
            A(f"v_add_f32 v{a}, v{a}, v{b}")
        self.nop(2)
        for e in range(8):
            a, b = acc(0, 0, e), acc(0, 1, e)
            A(f"v_add_f32_dpp v{a}, v{a}, v{a} row_ror:8 row_mask:0xf bank_mask:0x3")
        for e in range(8):
            a, b = acc(0, 0, e), acc(0, 1, e)
            A(f"v_add_f32_dpp v{a}, v{b}, v{b} row_ror:8 row_mask:0xf bank_mask:0xc")
        A("ds_write_b128 v9, v[64:67]")
        A("ds_write_b128 v9, v[68:71] offset:16")
        A("s_waitcnt lgkmcnt(0)")
        A("s_barrier")
        for w in range(4):
            A(f"ds_read_b64 v[{80+2*w}:{81+2*w}], v10 offset:{w*2048}")
        A("ds_read_b128 v[88:91], v60")
        def wot(t):
            A(f"ds_read_b64_tr_b16 v[{128+4*t}:{129+4*t}], v11 offset:{t*32}")
            A(f"ds_read_b64_tr_b16 v[{130+4*t}:{131+4*t}], v11 offset:{t*32+4*896}")
        A("s_waitcnt lgkmcnt(0)")
        A("v_pk_mul_f32 v[92:93], v[80:81], v[88:89] op_sel:[0,0] op_sel_hi:[1,0]")
        A("v_pk_fma_f32 v[92:93], v[82:83], v[88:89], v[92:93] op_sel:[0,1,0] op_sel_hi:[1,1,1]")
        A("v_pk_fma_f32 v[92:93], v[84:85], v[90:91], v[92:93] op_sel:[0,0,0] op_sel_hi:[1,0,1]")
        A("v_pk_fma_f32 v[92:93], v[86:87], v[90:91], v[92:93] op_sel:[0,1,0] op_sel_hi:[1,1,1]")
        A("v_bitop3_b32 v94, v92, v93, s58 bitop3:0x96")
        A("v_mov_b32 v95, v94")
        A("buffer_store_dwordx4 v[92:95], v6, s[36:39], 0 offen sc1")
        for t in range(7):
            wot(t)
        X = 96
        loads = [f"buffer_load_dwordx4 v[{X+4*i}:{X+4*i+3}], v7, s[36:39], 0 offen offset:{i*1024} sc1" for i in range(4)]
        self.poll(loads, [[X + 4 * i, X + 4 * i + 1, X + 4 * i + 2] for i in range(4)], 112)
        self.stamp(6)
        vals = [X + 4 * i + k for i in range(4) for k in range(2)]
        self.row_allreduce("v_add_f32", vals)
        for i in range(4):
            A(f"v_cvt_pk_bf16_f32 v{116+i}, v{X+4*i}, v{X+4*i+1}")
        A("s_waitcnt lgkmcnt(0)")
        self.nop(1)
        for t in range(7):
            A(f"v_mfma_f32_16x16x32_bf16 v[{160+4*t}:{163+4*t}], v[116:119], v[{128+4*t}:{131+4*t}], 0")
        D = [160 + 4 * t for t in range(7)]
        self.nop(8)
        A(f"v_bitop3_b32 v123, v{D[0]}, v{D[1]}, s58 bitop3:0x96")
        A(f"v_bitop3_b32 v123, v123, v{D[2]}, v{D[3]} bitop3:0x96")
        A(f"v_bitop3_b32 v123, v123, v{D[4]}, v{D[5]} bitop3:0x96")
        A(f"v_xor_b32 v123, v123, v{D[6]}")
        for i in range(3):
            A(f"v_cndmask_b32_e64 v{120+i}, v{D[i]}, v{D[4+i]}, s[64:65]")
        A(f"v_cndmask_b32_e64 v123, v{D[3]}, v123, s[64:65]")
        A("s_mov_b32 exec_hi, 0")
        A("buffer_store_dwordx4 v[120:123], v8, s[36:39], 0 offen sc1")
        self.write_stamps()
        A("s_endpgm")

    def stream_setup(self):
        A = self.A
        self.srd(36, "s28", "s29", WS_USED)
        A("s_mov_b32 s64, 0xffff0000")
        A("s_mov_b32 s65, 0")
        A("s_lshl_b32 s68, s3, 12")
        A("v_lshlrev_b32 v4, 4, v14")
        A("v_add_u32 v4, s68, v4")
        A("v_lshrrev_b32 v61, 3, v0")
        A("v_and_b32 v62, 7, v0")
        A("v_lshlrev_b32 v2, 9, v61")
        A("v_lshl_or_b32 v2, v62, 4, v2")
        A("v_lshlrev_b32 v5, 4, v61")
        A("v_add_u32 v5, s68, v5")
        A("v_and_b32 v63, 1, v61")
        A("v_lshlrev_b32 v9, 10, v63")
        A("v_lshl_or_b32 v9, v13, 8, v9")
        A("v_lshl_or_b32 v9, v62, 5, v9")
        A("s_lshl_b32 s69, s3, 11")
        A(f"s_add_u32 s69, s69, {L_PART}")
        A("v_add_u32 v9, s69, v9")
        A("s_lshl_b32 s69, s3, 9")
        A(f"s_add_u32 s69, s69, {L_PART}")
        A("v_lshlrev_b32 v10, 3, v0")
        A("v_add_u32 v10, s69, v10")
        A("s_lshr_b32 s69, s3, 1")
        A("s_lshl_b32 s69, s69, 4")
        A(f"s_add_u32 s69, s69, {L_F}")
        A("v_mov_b32 v60, s69")
        A("s_lshl_b32 s69, s54, 4")
        A("s_lshl_b32 s71, s3, 2")
        A("s_add_u32 s69, s69, s71")
        A("s_lshl_b32 s69, s69, 12")
        A("s_lshl_b32 s71, s55, 6")
        A("s_add_u32 s69, s69, s71")
        A(f"s_add_u32 s69, s69, {W_H1:#x}")
        A("v_lshlrev_b32 v6, 12, v13")
        A("v_and_b32 v63, 3, v0")
        A("v_lshl_or_b32 v6, v63, 10, v6")
        A("v_bfe_u32 v63, v0, 2, 2")
        A("v_lshl_or_b32 v6, v63, 4, v6")
        A("v_add_u32 v6, s69, v6")
        A("s_lshl_b32 s69, s54, 4")
        A("s_add_u32 s69, s69, s55")
        A("s_lshl_b32 s69, s69, 12")
        A(f"s_add_u32 s69, s69, {W_H1:#x}")
        A("v_lshlrev_b32 v7, 6, v12")
        A("v_lshl_or_b32 v7, v13, 4, v7")
        A("v_add_u32 v7, s69, v7")
        A("s_lshl_b32 s69, s56, 6")
        A("s_lshl_b32 s71, s3, 4")
        A("s_add_u32 s69, s69, s71")
        A("s_lshl_b32 s69, s69, 12")
        A("s_lshl_b32 s71, s57, 4")
        A("s_add_u32 s71, s71, s55")
        A("s_lshl_b32 s71, s71, 4")
        A("s_add_u32 s69, s69, s71")
        A(f"s_add_u32 s69, s69, {W_H2:#x}")
        A("v_lshlrev_b32 v8, 12, v12")
        A("v_and_b32 v63, 1, v13")
        A("v_lshl_or_b32 v8, v63, 11, v8")
        A("v_add_u32 v8, s69, v8")
        A("v_lshrrev_b32 v63, 2, v12")
        A("v_lshl_add_u32 v63, v13, 3, v63")
        A("v_mul_u32_u24 v11, 896, v63")
        A("v_and_b32 v63, 3, v12")
        A("v_lshl_add_u32 v11, v63, 3, v11")
        A("s_mul_i32 s69, s3, 224")
        A(f"s_add_u32 s69, s69, {L_WO:#x}")
        A("v_add_u32 v11, s69, v11")
        A("v_and_b32 v63, 1, v14")
        A("v_lshlrev_b32 v12, 9, v63")
        A("v_lshl_or_b32 v12, v15, 6, v12")
        A("v_lshl_or_b32 v12, v13, 4, v12")
        A(f"v_add_u32 v12, {L_Q:#x}, v12")
        A(f"v_mov_b32 v13, {L_TAG:#x}")
        A("v_lshlrev_b32 v14, 4, v0")
        A("v_add_u32 v14, s68, v14")
        A("s_lshl_b32 s69, s3, 4")
        A(f"s_add_u32 s69, s69, {L_ST:#x}")
        A("v_mov_b32 v15, s69")

    def dma(self, vaddr, srd, soff, ldsaddr):
        A = self.A
        A(f"s_mov_b32 m0, {ldsaddr:#x}")
        if isinstance(soff, int):
            if soff == 0:
                so = "0"
                self.nop(1)
            else:
                A(f"s_mov_b32 s71, {soff:#x}")
                so = "s71"
        else:
            so = soff
            self.nop(1)
        A(f"buffer_load_dwordx4 v{vaddr}, s[{srd}:{srd+3}], {so} offen lds")

    def helper(self):
        A = self.A
        p = self.p
        A("s_setprio 3")
        A("v_and_b32 v12, 15, v0")
        A("v_lshrrev_b32 v13, 4, v0")
        A("s_and_b32 s66, s2, 7")
        A("s_lshr_b32 s67, s2, 5")
        A("s_lshl_b32 s67, s67, 3")
        A("s_or_b32 s66, s66, s67")
        A("s_lshl_b32 s66, s66, 2")
        A("s_bfe_u32 s67, s2, 0x20003")
        A("s_add_u32 s66, s66, s67")
        A("v_lshrrev_b32 v1, 1, v0")
        A("v_lshlrev_b32 v1, 13, v1")
        A("v_and_b32 v2, 1, v0")
        A("v_lshl_or_b32 v1, v2, 4, v1")
        A("s_lshl_b32 s67, s66, 5")
        A("v_add_u32 v1, s67, v1")
        A("v_lshlrev_b32 v2, 4, v0")
        A("s_waitcnt lgkmcnt(0)")
        A("s_load_dword s58, s[28:29], 0")
        self.srd(40, "s10", "s11", 448 * 8192)
        self.srd(44, "s4", "s5", 1792)
        for i in range(14):
            self.dma(1, 40, i * 0x40000, L_WQ + i * 1024)
        self.dma(2, 44, 0, L_X)
        self.dma(2, 44, 1024, L_X + 1024)
        self.srd(36, "s28", "s29", WS_USED)
        A("v_lshrrev_b32 v5, 2, v12")
        A("v_lshl_add_u32 v5, v13, 3, v5")
        A("v_and_b32 v6, 3, v12")
        A("v_lshlrev_b32 v3, 5, v5")
        A("v_lshl_or_b32 v3, v6, 3, v3")
        A(f"v_add_u32 v3, {L_WQ:#x}, v3")
        A("v_and_b32 v7, 1, v12")
        A("v_mul_u32_u24 v4, 896, v7")
        A("v_lshl_add_u32 v4, v13, 4, v4")
        A(f"v_add_u32 v4, {L_X:#x}, v4")
        A("v_lshlrev_b32 v8, 14, v7")
        A("v_lshl_or_b32 v8, v13, 4, v8")
        A("s_lshl_b32 s67, s66, 6")
        A(f"s_add_u32 s67, s67, {W_Q:#x}")
        A("v_add_u32 v8, s67, v8")
        A("s_lshl_b32 s67, s54, 11")
        A(f"s_add_u32 s67, s67, {W_Q:#x}")
        A("v_add_u32 v9, s67, v2")
        A("v_lshlrev_b32 v10, 3, v0")
        A(f"v_add_u32 v10, {L_Q:#x}, v10")
        A("s_waitcnt lgkmcnt(0)")
        A("s_add_u32 s76, s58, 2")
        A("s_or_b32 s76, s76, 1")
        A("s_mul_i32 s58, s76, 0x9E3779B1")
        A("s_waitcnt vmcnt(0)")
        self.stamp(1)
        XB = 16
        WA = 72
        for s in range(14):
            A(f"ds_read_b128 v[{XB+4*s}:{XB+4*s+3}], v4 offset:{s*64}")
            A(f"ds_read_b64_tr_b16 v[{WA+4*s}:{WA+4*s+1}], v3 offset:{s*1024}")
            A(f"ds_read_b64_tr_b16 v[{WA+4*s+2}:{WA+4*s+3}], v3 offset:{s*1024+128}")
            if s >= 4:
                k = s - 4
                A("s_waitcnt lgkmcnt(12)")
                c = "0" if k == 0 else "v[128:131]"
                A(f"v_mfma_f32_16x16x32_bf16 v[128:131], v[{WA+4*k}:{WA+4*k+3}], v[{XB+4*k}:{XB+4*k+3}], {c}")
        for k in range(10, 14):
            A(f"s_waitcnt lgkmcnt({(13-k)*3})")
            A(f"v_mfma_f32_16x16x32_bf16 v[128:131], v[{WA+4*k}:{WA+4*k+3}], v[{XB+4*k}:{XB+4*k+3}], v[128:131]")
        self.nop(8)
        A("v_cvt_pk_bf16_f32 v132, v128, v129")
        A("v_cvt_pk_bf16_f32 v133, v130, v131")
        A("v_bitop3_b32 v134, v132, v133, s58 bitop3:0x96")
        A("v_mov_b32 v135, v134")
        A("s_mov_b32 s64, 0x00030003")
        A("s_mov_b32 s65, 0x00030003")
        A("s_mov_b64 exec, s[64:65]")
        A("buffer_store_dwordx4 v[132:135], v8, s[36:39], 0 offen sc1")
        A("s_mov_b64 exec, -1")
        self.stamp(2)
        loads = [f"buffer_load_dwordx4 v[{136+4*i}:{139+4*i}], v9, s[36:39], 0 offen offset:{i*1024} sc1" for i in range(2)]
        self.poll(loads, [[136, 137, 138], [140, 141, 142]], 144)
        A("ds_write_b64 v10, v[136:137]")
        A("ds_write_b64 v10, v[140:141] offset:512")
        A("v_mov_b32 v144, s58")
        A(f"v_mov_b32 v145, {L_TAG:#x}")
        A("ds_write_b32 v145, v144")
        A("s_waitcnt lgkmcnt(0)")
        self.stamp(3)
        A("s_barrier")
        self.srd(40, "s12", "s13", 4096 * 896)
        A("s_lshl_b32 s67, s57, 4")
        A("s_add_u32 s67, s67, s55")
        A(f"s_mul_i32 s68, s67, 28672")
        for i in range(28):
            A(f"s_add_u32 s69, s68, {i*1024}")
            self.dma(2, 40, "s69", L_WO + i * 1024)
        A("s_and_b32 s68, s2, 7")
        A("s_lshr_b32 s69, s2, 6")
        A("s_lshl_b32 s69, s69, 3")
        A("s_add_u32 s68, s68, s69")
        A("s_cmp_ge_u32 s68, 28")
        A("s_cbranch_scc1 L_noffn")
        A("s_lshl_b32 s68, s68, 3")
        A("s_bfe_u32 s69, s2, 0x30003")
        A("s_add_u32 s77, s68, s69")
        A("v_mul_u32_u24 v1, 3584, v0")
        A("s_lshl_b32 s68, s77, 4")
        A("v_add_u32 v1, s68, v1")
        self.srd(40, "s16", "s17", 448 * 3584)
        self.srd(44, "s18", "s19", 448 * 3584)
        for i in range(7):
            self.dma(1, 40, i * 64 * 3584, L_W1 + i * 1024)
            self.dma(1, 44, i * 64 * 3584, L_W3 + i * 1024)
        self.srd(48, "s20", "s21", 1792 * 896)
        A("s_mul_i32 s68, s77, 7168")
        for i in range(7):
            A(f"s_add_u32 s69, s68, {i*1024}")
            self.dma(2, 48, "s69", L_W2 + i * 1024)
        A("v_lshrrev_b32 v8, 1, v6")
        A("v_mul_u32_u24 v3, 7168, v8")
        A("v_lshl_add_u32 v3, v5, 4, v3")
        A("v_and_b32 v8, 1, v6")
        A("v_lshl_add_u32 v3, v8, 3, v3")
        A(f"v_add_u32 v3, {L_W1:#x}, v3")
        A("s_waitcnt vmcnt(0)")
        for s in range(14):
            A(f"ds_read_b64_tr_b16 v[{WA+4*s}:{WA+4*s+1}], v3 offset:{s*512}")
            A(f"ds_read_b64_tr_b16 v[{WA+4*s+2}:{WA+4*s+3}], v3 offset:{s*512+64}")
            if s % 7 == 6:
                A("s_waitcnt lgkmcnt(0)")
        for k in range(14):
            c = "0" if k == 0 else "v[128:131]"
            A(f"v_mfma_f32_16x16x32_bf16 v[128:131], v[{WA+4*k}:{WA+4*k+3}], v[{XB+4*k}:{XB+4*k+3}], {c}")
        A("v_and_b32 v8, 1, v13")
        A("v_lshrrev_b32 v9, 2, v12")
        A("v_lshl_add_u32 v8, v8, 2, v9")
        A("v_mul_u32_u24 v3, 896, v8")
        A("v_lshl_add_u32 v3, v6, 3, v3")
        A(f"v_add_u32 v3, {L_W2:#x}, v3")
        for t in range(28):
            A(f"ds_read_b64_tr_b16 v[{144+2*t}:{145+2*t}], v3 offset:{t*32}")
            if t % 14 == 13:
                A("s_waitcnt lgkmcnt(0)")
        for i in range(4):
            self.round_bf16(128 + i)
        for i in range(4):
            A(f"v_mov_b32 v{132+i}, v{128+i}")
        self.nop(2)
        for i in range(4):
            A(f"v_permlane32_swap_b32 v{128+i}, v{132+i}")
        self.nop(1)
        for i in range(4):
            A(f"v_mul_f32 v{136+i}, {f2u(-LOG2E):#x}, v{128+i}")
        for i in range(4):
            A(f"v_exp_f32 v{136+i}, v{136+i}")
        self.nop(1)
        for i in range(4):
            A(f"v_add_f32 v{136+i}, 1.0, v{136+i}")
        for i in range(4):
            A(f"v_rcp_f32 v{136+i}, v{136+i}")
        self.nop(1)
        for i in range(4):
            A(f"v_mul_f32 v{128+i}, v{128+i}, v{136+i}")
        for i in range(4):
            self.round_bf16(128 + i)
        for i in range(4):
            A(f"v_mul_f32 v{128+i}, v{128+i}, v{132+i}")
        A("v_cvt_pk_bf16_f32 v128, v128, v129")
        A("v_cvt_pk_bf16_f32 v129, v130, v131")
        for u in range(4):
            m16 = 0xf << (4 * u)
            A(f"s_mov_b32 s64, {m16 | (m16 << 16):#x}")
            A("s_mov_b32 s65, 0")
            A(f"v_cndmask_b32_e64 v{132+2*u}, 0, v128, s[64:65]")
            A(f"v_cndmask_b32_e64 v{133+2*u}, 0, v129, s[64:65]")
        self.nop(2)
        DB = 200
        for u in range(4):
            for t in range(7):
                c = "0" if u == 0 else f"v[{DB+4*t}:{DB+4*t+3}]"
                tl = 7 * u + t
                A(f"v_mfma_f32_16x16x16_bf16 v[{DB+4*t}:{DB+4*t+3}], v[{132+2*u}:{133+2*u}], v[{144+2*tl}:{145+2*tl}], {c}")
        A("v_lshlrev_b32 v8, 13, v0")
        A("s_lshl_b32 s68, s77, 4")
        A(f"s_add_u32 s68, s68, {W_BP:#x}")
        A("v_add_u32 v8, s68, v8")
        self.nop(8)
        for b in range(2):
            o = 232 + 8 * b
            for t in range(7):
                A(f"v_mov_b32 v{o+t}, v{DB+4*t+b}")
            A(f"v_bitop3_b32 v{o+7}, v{o}, v{o+1}, s58 bitop3:0x96")
            A(f"v_bitop3_b32 v{o+7}, v{o+7}, v{o+2}, v{o+3} bitop3:0x96")
            A(f"v_bitop3_b32 v{o+7}, v{o+7}, v{o+4}, v{o+5} bitop3:0x96")
            A(f"v_xor_b32 v{o+7}, v{o+7}, v{o+6}")
            A(f"s_mov_b32 s68, {b*64*8192:#x}")
            A(f"s_mov_b32 s69, {b*64*8192+4096:#x}")
            A(f"buffer_store_dwordx4 v[{o}:{o+3}], v8, s[36:39], s68 offen sc1")
            A(f"buffer_store_dwordx4 v[{o+4}:{o+7}], v8, s[36:39], s69 offen sc1")
        self.lab("L_noffn")
        self.srd(44, "s22", "s23", 896)
        A("buffer_load_dwordx4 v[128:131], v2, s[44:47], 0 offen")
        A("s_mul_i32 s68, s56, 896")
        A(f"s_add_u32 s68, s68, {L_X:#x}")
        A("v_add_u32 v8, s68, v2")
        A("ds_read_b128 v[132:135], v8")
        A("s_waitcnt vmcnt(0) lgkmcnt(0)")
        for d in range(4):
            A(f"v_lshlrev_b32 v136, 16, v{128+d}")
            A(f"v_and_b32 v137, s62, v{128+d}")
            A(f"v_lshlrev_b32 v138, 16, v{132+d}")
            A(f"v_and_b32 v139, s62, v{132+d}")
            A("v_mul_f32 v136, v136, v138")
            A("v_mul_f32 v137, v137, v139")
            A("v_cvt_pk_bf16_f32 v137, v136, v137")
            A("v_lshlrev_b32 v136, 16, v137")
            A("v_and_b32 v137, s62, v137")
            if d == 0:
                A("v_add_f32 v140, v136, v137")
            else:
                A("v_add_f32 v140, v140, v136")
                A("v_add_f32 v140, v140, v137")
        A("s_mov_b32 s64, -1")
        A("s_mov_b32 s65, 0x00ffffff")
        A("v_cndmask_b32_e64 v140, 0, v140, s[64:65]")
        self.row_allreduce("v_add_f32", [140])
        self.swap_allreduce("v_add_f32", [140], [141], 16)
        self.swap_allreduce("v_add_f32", [140], [141], 32)
        self.round_bf16(140)
        A(f"v_mul_f32 v140, {f2u(-LOG2E):#x}, v140")
        A("v_exp_f32 v140, v140")
        self.nop(1)
        A("v_add_f32 v140, 1.0, v140")
        A("v_rcp_f32 v14, v140")
        self.nop(1)
        self.round_bf16(14)
        A("v_sub_f32 v15, 1.0, v14")
        self.round_bf16(15)
        self.stamp(4)
        A("s_waitcnt vmcnt(0)")
        A("s_barrier")
        A("v_lshlrev_b32 v8, 3, v7")
        A(f"v_add_u32 v8, {L_ST:#x}, v8")
        for w in range(4):
            A(f"ds_read_b64 v[{128+2*w}:{129+2*w}], v8 offset:{w*16}")
        A("s_lshl_b32 s68, s54, 9")
        A(f"s_add_u32 s68, s68, {W_ST:#x}")
        A("s_lshl_b32 s69, s55, 5")
        A("s_add_u32 s69, s69, s68")
        A("v_lshlrev_b32 v9, 4, v7")
        A("v_add_u32 v9, s69, v9")
        A("v_and_b32 v10, 31, v0")
        A("v_lshlrev_b32 v10, 4, v10")
        A("v_add_u32 v10, s68, v10")
        A("s_waitcnt lgkmcnt(0)")
        A("v_max3_f32 v136, v128, v130, v132")
        A("v_max_f32 v136, v136, v134")
        for w in range(4):
            A(f"v_sub_f32 v{140+w}, v{128+2*w}, v136")
        for w in range(4):
            A(f"v_exp_f32 v{140+w}, v{140+w}")
        self.nop(1)
        A("v_mul_f32 v137, v140, v129")
        for w in range(1, 4):
            A(f"v_fmac_f32 v137, v{140+w}, v{129+2*w}")
        A("v_bitop3_b32 v138, v136, v137, s58 bitop3:0x96")
        A("v_mov_b32 v139, v138")
        A("s_mov_b64 exec, 3")
        A("buffer_store_dwordx4 v[136:139], v9, s[36:39], 0 offen sc1")
        A("s_mov_b64 exec, -1")
        self.poll(["buffer_load_dwordx4 v[144:147], v10, s[36:39], 0 offen sc1"], [[144, 145, 146]], 148, sleep=8)
        A("v_mov_b32 v148, v144")
        self.row_allreduce("v_max_f32", [148], steps=(8, 4, 2))
        self.swap_allreduce("v_max_f32", [148], [149], 16)
        A("v_sub_f32 v144, v144, v148")
        A("v_exp_f32 v144, v144")
        self.nop(1)
        A("v_mul_f32 v145, v145, v144")
        self.row_allreduce("v_add_f32", [145], steps=(8, 4, 2))
        self.swap_allreduce("v_add_f32", [145], [149], 16)
        A("v_rcp_f32 v145, v145")
        for w in range(4):
            A(f"v_sub_f32 v{140+w}, v{128+2*w}, v148")
        for w in range(4):
            A(f"v_exp_f32 v{140+w}, v{140+w}")
        self.nop(1)
        for w in range(4):
            A(f"v_mul_f32 v{140+w}, v{140+w}, v145")
        A("v_lshlrev_b32 v8, 4, v7")
        A(f"v_add_u32 v8, {L_F:#x}, v8")
        A("s_mov_b64 exec, 3")
        A("ds_write_b128 v8, v[140:143]")
        A("s_mov_b64 exec, -1")
        A("s_cmp_ge_u32 s67, 64")
        A("s_cbranch_scc1 L_notcons")
        A("s_lshl_b32 s68, s56, 6")
        A("s_add_u32 s68, s68, s67")
        A("s_lshl_b32 s69, s68, 13")
        A(f"s_add_u32 s69, s69, {W_BP:#x}")
        A("v_add_u32 v8, s69, v2")
        A("s_mov_b32 s78, 4096")
        A("s_mov_b32 s64, -1")
        A("s_mov_b32 s65, 0")
        loads = []
        groups = []
        for q in range(4):
            o = 128 + 8 * q
            loads.append(f"buffer_load_dwordx4 v[{o}:{o+3}], v8, s[36:39], 0 offen offset:{q*1024} sc1")
            loads.append(f"buffer_load_dwordx4 v[{o+4}:{o+7}], v8, s[36:39], s78 offen offset:{q*1024} sc1")
            regs = list(range(o, o + 8))
            groups.append((regs, "s[64:65]") if q == 3 else regs)
        self.poll(loads, groups, 160, sleep=8)
        for t in range(7):
            A(f"v_cndmask_b32_e64 v{152+t}, 0, v{152+t}, s[64:65]")
        for t in range(7):
            A(f"v_add_f32 v{128+t}, v{128+t}, v{136+t}")
            A(f"v_add_f32 v{144+t}, v{144+t}, v{152+t}")
        for t in range(7):
            A(f"v_add_f32 v{128+t}, v{128+t}, v{144+t}")
        self.reduce7(list(range(128, 135)), 135)
        self.round_bf16(128)
        A("v_mul_f32 v15, v15, v128")
        self.round_bf16(15)
        A("s_lshl_b32 s69, s68, 12")
        A(f"s_add_u32 s69, s69, {W_H2:#x}")
        A("v_add_u32 v8, s69, v2")
        self.srd(48, "s24", "s25", 1792)
        A("s_lshr_b32 s69, s67, 4")
        A("s_mul_i32 s69, s69, 112")
        A("s_and_b32 s71, s67, 15")
        A("s_add_u32 s69, s69, s71")
        A("s_lshl_b32 s69, s69, 1")
        A("s_mul_i32 s71, s56, 896")
        A("s_add_u32 s69, s69, s71")
        A("v_lshrrev_b32 v9, 3, v0")
        A("v_lshlrev_b32 v9, 5, v9")
        A("v_add_u32 v9, s69, v9")
        self.stamp(5)
        A("s_waitcnt lgkmcnt(0)")
        A("s_barrier")
        loads = []
        for q in range(2):
            o = 128 + 8 * q
            loads.append(f"buffer_load_dwordx4 v[{o}:{o+3}], v8, s[36:39], 0 offen offset:{q*1024} sc1")
            loads.append(f"buffer_load_dwordx4 v[{o+4}:{o+7}], v8, s[36:39], 0 offen offset:{2048+q*1024} sc1")
        self.poll(loads, [list(range(128, 136)), list(range(136, 144))], 160)
        self.stamp(6)
        for t in range(7):
            A(f"v_add_f32 v{128+t}, v{128+t}, v{136+t}")
        self.reduce7(list(range(128, 135)), 135)
        self.round_bf16(128)
        A("v_mul_f32 v128, v14, v128")
        self.round_bf16(128)
        A("v_add_f32 v128, v128, v15")
        A("v_cvt_pk_bf16_f32 v128, v128, v128")
        A("s_mov_b32 s64, 0x01010101")
        A("s_mov_b32 s65, 0x00010101")
        A("s_mov_b64 exec, s[64:65]")
        A("buffer_store_short v128, v9, s[48:51], 0 offen")
        A("s_cmp_lg_u32 s68, 0")
        A("s_cbranch_scc1 L_hend")
        A("s_mov_b64 exec, 1")
        A("v_mov_b32 v130, s76")
        A("v_mov_b32 v131, 0")
        A("buffer_store_dword v130, v131, s[36:39], 0 offen sc1")
        A("s_branch L_hend")
        self.lab("L_notcons")
        A("s_waitcnt lgkmcnt(0)")
        A("s_barrier")
        self.lab("L_hend")
        self.write_stamps()


if __name__ == "__main__":
    import json
    out = sys.argv[1]
    kw = json.loads(sys.argv[2]) if len(sys.argv) > 2 else {}
    open(out, "w").write(G(**kw).gen())
```

```python
import sys, math, struct

KNAME = "gated_mix__gqa_block_cached__glu_gated_swiglu__decode_kernel"

HEADER = """; Kernarg layout for this problem (104 bytes, ptrs only, base s[0:1]):
;   offset  96: d_ws      1073741824 bytes workspace (unspecified values whenever your kernel or launch list starts; a list's later launches find what earlier ones wrote)
"""

L_SC = 0x0000
L_Q = 0x4000
L_TAG = 0x4400
L_F = 0x4420
L_ST = 0x4480
L_X = 0x4800
L_PART = 0x5000
L_WQ = 0x7000
L_W1 = 0xA800
L_W3 = 0xC400
L_W2 = 0xE000
L_WO = 0x10000
LDS_BYTES = 0x17000

W_EPOCH = 0
W_Q = 0x1000
W_ST = 0x10000
W_H1 = 0x100000
W_H2 = 0x200000
W_BP = 0x300000
WS_USED = 0x400000

def f2u(f):
    return struct.unpack("<I", struct.pack("<f", f))[0]

LOG2E = 1.4426950408889634

class G:
    def __init__(self, **p):
        self.L = []
        self.p = dict(pace=10, stamps=False, round_scores=True, spin=0x40000, kflags="nt", vflags="nt",
                      mapping="x128", b0=True, wflags="", qflags="", abl="", cpref=True, fflags=None)
        self.p.update(p)
        self.nlab = 0
        self.nstamp = 0

    def A(self, s):
        self.L.append("    " + s)

    def lab(self, name):
        self.L.append(name + ":")

    def newlab(self, base):
        self.nlab += 1
        return f"L_{base}{self.nlab}"

    def nop(self, n):
        if n > 0:
            self.A(f"s_nop {n-1}")

    def stamp(self, k):
        if self.p["stamps"]:
            self.A(f"s_memrealtime s[{80+2*k}:{81+2*k}]")

    def write_stamps(self):
        if not self.p["stamps"]:
            return
        A = self.A
        self.stamp(7)
        A("s_mov_b64 exec, -1")
        A("s_mul_i32 s68, s2, 5")
        A("s_add_u32 s68, s68, s3")
        A("s_lshl_b32 s69, s68, 4")
        A("s_add_u32 s69, s69, 0x20000000")
        A("s_lshl_b32 s68, s68, 7")
        A("s_add_u32 s68, s68, 0x21000000")
        A("s_waitcnt vmcnt(0) lgkmcnt(0)")
        A("v_mov_b32 v12, s69")
        A("v_mov_b32 v13, s68")
        for i in range(16):
            A(f"v_mov_b32 v{16+i}, s{80+i}")
        A("v_mov_b32 v32, s80"); A("v_mov_b32 v33, s81"); A("v_mov_b32 v34, s94"); A("v_mov_b32 v35, s95")
        A("s_mov_b64 exec, 1")
        A("global_store_dwordx4 v12, v[32:35], s[28:29]")
        for i in range(4):
            A(f"global_store_dwordx4 v13, v[{16+4*i}:{19+4*i}], s[28:29] offset:{16*i}")
        A("s_waitcnt vmcnt(0)")

    def row_allreduce(self, op, regs, steps=(8, 4, 2, 1)):
        A = self.A
        self.nop(2)
        for st in steps:
            for r in regs:
                A(f"{op}_dpp v{r}, v{r}, v{r} row_ror:{st} row_mask:0xf bank_mask:0xf")
            if len(regs) < 3:
                self.nop(3 - len(regs))

    def swap_allreduce(self, op, regs, tmps, which):
        A = self.A
        for r, t in zip(regs, tmps):
            A(f"v_mov_b32 v{t}, v{r}")
        self.nop(2)
        for r, t in zip(regs, tmps):
            A(f"v_permlane{which}_swap_b32 v{r}, v{t}")
        self.nop(1)
        for r, t in zip(regs, tmps):
            A(f"{op} v{r}, v{r}, v{t}")

    def round_bf16(self, r, t=None):
        A = self.A
        A(f"v_cvt_pk_bf16_f32 v{r}, v{r}, v{r}")
        A(f"v_and_b32 v{r}, s62, v{r}")

    def reduce7(self, v, z):
        A = self.A
        A(f"v_mov_b32 v{z}, 0")
        w = list(v) + [z]
        self.nop(2)
        for i in range(4):
            A(f"v_permlane32_swap_b32 v{w[i]}, v{w[i+4]}")
        self.nop(1)
        for i in range(4):
            A(f"v_add_f32 v{w[i]}, v{w[i]}, v{w[i+4]}")
        self.nop(2)
        for i in range(2):
            A(f"v_permlane16_swap_b32 v{w[i]}, v{w[i+2]}")
        self.nop(1)
        for i in range(2):
            A(f"v_add_f32 v{w[i]}, v{w[i]}, v{w[i+2]}")
        self.nop(2)
        A(f"v_add_f32_dpp v{w[0]}, v{w[0]}, v{w[0]} row_ror:8 row_mask:0xf bank_mask:0x3")
        A(f"v_add_f32_dpp v{w[0]}, v{w[1]}, v{w[1]} row_ror:8 row_mask:0xf bank_mask:0xc")
        self.nop(2)
        A(f"v_add_f32_dpp v{w[0]}, v{w[0]}, v{w[0]} row_half_mirror row_mask:0xf bank_mask:0xf")
        self.nop(2)
        A(f"v_add_f32_dpp v{w[0]}, v{w[0]}, v{w[0]} quad_perm:[1,0,3,2] row_mask:0xf bank_mask:0xf")
        self.nop(2)
        A(f"v_add_f32_dpp v{w[0]}, v{w[0]}, v{w[0]} quad_perm:[2,3,0,1] row_mask:0xf bank_mask:0xf")

    def srd(self, d, lo, hi, nbytes):
        A = self.A
        A(f"s_mov_b32 s{d}, {lo}")
        A(f"s_mov_b32 s{d+1}, {hi}")
        A(f"s_mov_b32 s{d+2}, {nbytes:#x}")
        A(f"s_mov_b32 s{d+3}, 0x00020000")

    def poll(self, loads, groups, tmp, sleep=0):
        A = self.A
        lp = self.newlab("poll")
        done = self.newlab("pdone")
        A(f"s_mov_b32 s70, {self.p['spin']:#x}")
        self.lab(lp)
        for l in loads:
            A(l)
        A("s_waitcnt vmcnt(0)")
        first = True
        for gi, g in enumerate(groups):
            mask = None
            if isinstance(g, tuple):
                g, mask = g
            regs = list(g)
            t = tmp + gi
            if len(regs) == 3:
                A(f"v_bitop3_b32 v{t}, v{regs[0]}, v{regs[1]}, v{regs[2]} bitop3:0x96")
            else:
                A(f"v_bitop3_b32 v{t}, v{regs[0]}, v{regs[1]}, v{regs[2]} bitop3:0x96")
                rest = regs[3:]
                while len(rest) >= 2:
                    A(f"v_bitop3_b32 v{t}, v{t}, v{rest[0]}, v{rest[1]} bitop3:0x96")
                    rest = rest[2:]
                if rest:
                    A(f"v_xor_b32 v{t}, v{t}, v{rest[0]}")
            dst = "s[72:73]" if first else "s[74:75]"
            A(f"v_cmp_ne_u32_e64 {dst}, s58, v{t}")
            if mask is not None:
                A(f"s_and_b64 {dst}, {dst}, {mask}")
            if not first:
                A("s_or_b64 s[72:73], s[72:73], s[74:75]")
            first = False
        A("s_cmp_eq_u64 s[72:73], 0")
        A(f"s_cbranch_scc1 {done}")
        if sleep:
            A(f"s_sleep {sleep}")
        A("s_sub_u32 s70, s70, 1")
        A("s_cmp_lg_u32 s70, 0")
        A(f"s_cbranch_scc1 {lp}")
        self.lab(done)

    def gen(self):
        A = self.A
        p = self.p
        L = self.L
        L.append(HEADER + f"; @launch grid=(256,1,1) block=(320,1,1) lds={LDS_BYTES}")
        L.append('.amdgcn_target "amdgcn-amd-amdhsa--gfx950"')
        L.append(".text")
        L.append(f".globl {KNAME}")
        L.append(".p2align 8")
        L.append(f".type {KNAME},@function")
        self.lab(KNAME)
        A("s_cmp_ge_u32 s2, 256")
        A("s_cbranch_scc1 L_end")
        A("s_load_dwordx16 s[4:19], s[0:1], 0")
        A("s_load_dwordx8 s[20:27], s[0:1], 64")
        A("s_load_dwordx2 s[28:29], s[0:1], 96")
        self.stamp(0)
        A("v_lshrrev_b32 v1, 6, v0")
        A("v_and_b32 v0, 63, v0")
        A("v_readfirstlane_b32 s3, v1")
        if p["mapping"] == "x128":
            A("s_and_b32 s52, s2, 127")
            A("s_lshr_b32 s53, s2, 7")
        elif p["mapping"] == "x128b":
            A("s_and_b32 s52, s2, 7")
            A("s_lshl_b32 s52, s52, 4")
            A("s_bfe_u32 s53, s2, 0x40003")
            A("s_add_u32 s52, s52, s53")
            A("s_lshr_b32 s53, s2, 7")
        A("s_lshr_b32 s54, s52, 3")
        A("s_and_b32 s55, s52, 7")
        A("s_lshl_b32 s55, s55, 1")
        A("s_add_u32 s55, s55, s53")
        A("s_lshr_b32 s56, s54, 3")
        A("s_and_b32 s57, s54, 7")
        A("s_mov_b32 s62, 0xffff0000")
        A("s_cmp_lg_u32 s3, 4")
        A("s_cbranch_scc1 L_stream")
        self.helper()
        A("s_endpgm")
        self.lab("L_stream")
        self.stream()
        self.lab("L_end")
        A("s_endpgm")
        L.append('.section .rodata,"a"')
        L.append(".p2align 6")
        L.append(f".amdhsa_kernel {KNAME}")
        L.append("  .amdhsa_next_free_vgpr 256")
        L.append("  .amdhsa_next_free_sgpr 102")
        L.append("  .amdhsa_accum_offset 256")
        L.append("  .amdhsa_group_segment_fixed_size 0")
        L.append("  .amdhsa_kernarg_size 104")
        L.append("  .amdhsa_user_sgpr_count 2")
        L.append("  .amdhsa_user_sgpr_kernarg_segment_ptr 1")
        L.append("  .amdhsa_system_sgpr_workgroup_id_x 1")
        L.append("  .amdhsa_float_denorm_mode_32 3")
        L.append(".end_amdhsa_kernel")
        return "\n".join(L) + "\n"

    def ring(self, rp, s, j):
        return 128 + ((rp * 2 + s) * 4 + j) * 4

    def ld(self, rp, s, j, flags):
        r = self.ring(rp, s, j)
        sb = "s61" if s else "s60"
        self.A(f"buffer_load_dwordx4 v[{r}:{r+3}], v3, s[32:35], {sb} offen offset:{j*128} {flags}")

    def stream(self):
        A = self.A
        p = self.p
        A("v_and_b32 v12, 15, v0")
        A("v_lshrrev_b32 v13, 4, v0")
        A("v_lshrrev_b32 v14, 1, v12")
        A("v_lshlrev_b32 v1, 9, v14")
        A("v_and_b32 v15, 1, v12")
        A("v_lshl_or_b32 v1, v15, 6, v1")
        A("v_lshl_or_b32 v1, v13, 4, v1")
        A("v_mov_b32 v3, v1")
        A("s_lshl_b32 s66, s53, 2")
        A("s_add_u32 s66, s66, s3")
        A("s_lshl_b32 s66, s66, 13")
        A("s_lshl_b32 s67, s52, 21")
        A("s_mov_b32 s60, s66")
        A("s_mov_b32 s34, 0x200000")
        A("s_mov_b32 s35, 0x00020000")
        A("s_waitcnt lgkmcnt(0)")
        A("s_add_u32 s32, s6, s67")
        A("s_addc_u32 s33, s7, 0")
        if p["b0"]:
            A("s_barrier")
        n = 0
        for rp in range(4):
            A("s_add_u32 s61, s60, 4096")
            for s in range(2):
                for j in range(4):
                    if n >= p["pace"]:
                        A(f"s_waitcnt vmcnt({p['pace']-1})")
                    self.ld(rp, s, j, p["kflags"])
                    n += 1
                    if n == p["pace"]:
                        self.stream_setup()
            A("s_add_u32 s60, s60, 0x10000")
        self.stamp(1)
        A("s_barrier")
        for j in range(4):
            A(f"ds_read_b128 v[{16+4*j}:{19+4*j}], v12 offset:{j*128}")
        A(f"ds_read_b32 v13, v13")
        A("s_mov_b32 s59, 0")
        A("s_waitcnt lgkmcnt(0)")
        A("v_readfirstlane_b32 s58, v13")
        self.stamp(2)
        self.lab("L_kloop")
        A("s_cmp_lg_u32 s59, 7")
        A("s_cbranch_scc1 L_knosw")
        A("s_add_u32 s32, s8, s67")
        A("s_addc_u32 s33, s9, 0")
        A("s_mov_b32 s60, s66")
        A("v_mov_b32 v3, v2")
        self.lab("L_knosw")
        for rp in range(4):
            A("s_add_u32 s61, s60, 4096")
            for s in range(2):
                d = 32 + 4 * s
                for j in range(4):
                    r = self.ring(rp, s, j)
                    A("s_waitcnt vmcnt(31)")
                    c = "0" if j == 0 else f"v[{d}:{d+3}]"
                    A(f"v_mfma_f32_16x16x32_bf16 v[{d}:{d+3}], v[{16+4*j}:{19+4*j}], v[{r}:{r+3}], {c}")
                    self.ld(rp, s, j, p["kflags"])
                self.nop(8)
                t = 40 + 2 * s
                A(f"v_add_f32_dpp v{t}, v{d+1}, v{d} quad_perm:[1,1,3,3] row_mask:0xf bank_mask:0xf")
                A(f"v_add_f32_dpp v{t+1}, v{d+3}, v{d+2} quad_perm:[1,1,3,3] row_mask:0xf bank_mask:0xf")
                if s == 1:
                    A("s_mov_b64 exec, 0x5555")
                    A(f"ds_write_b128 v4, v[40:43] offset:{rp*128}")
                    A("s_mov_b64 exec, -1")
            A("s_add_u32 s60, s60, 0x10000")
        A("v_add_u32 v4, 512, v4")
        A("s_add_u32 s59, s59, 1")
        A("s_cmp_lt_u32 s59, 8")
        A("s_cbranch_scc1 L_kloop")
        self.stamp(3)
        S = 64
        A("s_waitcnt lgkmcnt(0)")
        for i in range(4):
            A(f"ds_read_b128 v[{S+4*i}:{S+4*i+3}], v14 offset:{i*1024}")
        A(f"s_mov_b32 s63, {f2u(LOG2E/16):#x}")
        A("s_waitcnt lgkmcnt(0)")
        if p["round_scores"]:
            for i in range(8):
                a, b = S + 2 * i, S + 2 * i + 1
                A(f"v_cvt_pk_bf16_f32 v{b}, v{a}, v{b}")
                A(f"v_lshlrev_b32 v{a}, 16, v{b}")
                A(f"v_and_b32 v{b}, s62, v{b}")
        m = [84, 86]
        for h in range(2):
            A(f"v_max3_f32 v{m[h]}, v{S+h}, v{S+2+h}, v{S+4+h}")
            A(f"v_max3_f32 v{m[h]}, v{m[h]}, v{S+6+h}, v{S+8+h}")
            A(f"v_max3_f32 v{m[h]}, v{m[h]}, v{S+10+h}, v{S+12+h}")
            A(f"v_max_f32 v{m[h]}, v{m[h]}, v{S+14+h}")
        self.row_allreduce("v_max_f32", m)
        self.swap_allreduce("v_max_f32", m, [88, 89], 16)
        self.swap_allreduce("v_max_f32", m, [88, 89], 32)
        for h in range(2):
            A(f"v_mul_f32 v{m[h]}, s63, v{m[h]}")
        for i in range(16):
            A(f"v_fma_f32 v{S+i}, v{S+i}, s63, -v{m[i&1]}")
        for i in range(16):
            A(f"v_exp_f32 v{S+i}, v{S+i}")
        l = [85, 87]
        self.nop(1)
        for i in range(4):
            A(f"ds_write_b128 v14, v[{S+4*i}:{S+4*i+3}] offset:{i*1024}")
        for h in range(2):
            A(f"v_add_f32 v{l[h]}, v{S+h}, v{S+2+h}")
            for i in range(2, 8):
                A(f"v_add_f32 v{l[h]}, v{l[h]}, v{S+2*i+h}")
        self.row_allreduce("v_add_f32", l)
        self.swap_allreduce("v_add_f32", l, [88, 89], 16)
        self.swap_allreduce("v_add_f32", l, [88, 89], 32)
        A("s_mov_b64 exec, 1")
        A("ds_write_b128 v15, v[84:87]")
        A("s_mov_b64 exec, -1")
        A("s_waitcnt lgkmcnt(0)")
        A("ds_read_b128 v[44:47], v5")
        if "b2" not in p["abl"]:
            A("s_barrier")
        for i in range(64):
            A(f"v_mov_b32 v{64+i}, 0")
        A("s_mov_b32 s59, 0")
        self.stamp(4)
        def vbody(last):
            n = 0
            for rp in range(4):
                P = 44 + 4 * (rp & 1)
                Pn = 44 + 4 * ((rp + 1) & 1)
                if not last:
                    A("s_add_u32 s61, s60, 4096")
                A("s_waitcnt lgkmcnt(0)")
                if not (last and rp == 3):
                    A(f"ds_read_b128 v[{Pn}:{Pn+3}], v5 offset:{(rp+1)*128}")
                for s in range(2):
                    for j in range(4):
                        r = self.ring(rp, s, j)
                        A(f"s_waitcnt vmcnt({31 - n if last else 31})")
                        n += 1
                        for d in range(4):
                            A(f"v_lshlrev_b32 v{52+2*d}, 16, v{r+d}")
                            A(f"v_and_b32 v{53+2*d}, s62, v{r+d}")
                        if not last:
                            self.ld(rp, s, j, p["vflags"])
                        for h in range(2):
                            for d in range(4):
                                a = 64 + j * 16 + h * 8 + 2 * d
                                A(f"v_pk_fma_f32 v[{a}:{a+1}], v[{52+2*d}:{53+2*d}], v[{P+2*s}:{P+2*s+1}], v[{a}:{a+1}] op_sel:[0,{h},0] op_sel_hi:[1,{h},1]")
                if not last:
                    A("s_add_u32 s60, s60, 0x10000")
        self.lab("L_vloop")
        vbody(False)
        A("v_add_u32 v5, 512, v5")
        A("s_add_u32 s59, s59, 1")
        A("s_cmp_lt_u32 s59, 7")
        A("s_cbranch_scc1 L_vloop")
        vbody(True)
        self.stamp(5)
        acc = lambda j, h, e: 64 + j * 16 + h * 8 + e
        self.nop(2)
        prs = [(acc(j, h, e), acc(j + 2, h, e)) for j in range(2) for h in range(2) for e in range(8)]
        for a, b in prs:
            A(f"v_permlane32_swap_b32 v{a}, v{b}")
        for a, b in prs:
            A(f"v_add_f32 v{a}, v{a}, v{b}")
        prs = [(acc(0, h, e), acc(1, h, e)) for h in range(2) for e in range(8)]
        self.nop(2)
        for a, b in prs:
            A(f"v_permlane16_swap_b32 v{a}, v{b}")
        for a, b in prs:
            A(f"v_add_f32 v{a}, v{a}, v{b}")
        self.nop(2)
        for e in range(8):
            a, b = acc(0, 0, e), acc(0, 1, e)
            A(f"v_add_f32_dpp v{a}, v{a}, v{a} row_ror:8 row_mask:0xf bank_mask:0x3")
        for e in range(8):
            a, b = acc(0, 0, e), acc(0, 1, e)
            A(f"v_add_f32_dpp v{a}, v{b}, v{b} row_ror:8 row_mask:0xf bank_mask:0xc")
        A("ds_write_b128 v9, v[64:67]")
        A("ds_write_b128 v9, v[68:71] offset:16")
        A("s_waitcnt lgkmcnt(0)")
        A("s_barrier")
        for w in range(4):
            A(f"ds_read_b64 v[{80+2*w}:{81+2*w}], v10 offset:{w*2048}")
        A("ds_read_b128 v[88:91], v60")
        def wot(t):
            A(f"ds_read_b64_tr_b16 v[{128+4*t}:{129+4*t}], v11 offset:{t*32}")
            A(f"ds_read_b64_tr_b16 v[{130+4*t}:{131+4*t}], v11 offset:{t*32+4*896}")
        A("s_waitcnt lgkmcnt(0)")
        A("v_pk_mul_f32 v[92:93], v[80:81], v[88:89] op_sel:[0,0] op_sel_hi:[1,0]")
        A("v_pk_fma_f32 v[92:93], v[82:83], v[88:89], v[92:93] op_sel:[0,1,0] op_sel_hi:[1,1,1]")
        A("v_pk_fma_f32 v[92:93], v[84:85], v[90:91], v[92:93] op_sel:[0,0,0] op_sel_hi:[1,0,1]")
        A("v_pk_fma_f32 v[92:93], v[86:87], v[90:91], v[92:93] op_sel:[0,1,0] op_sel_hi:[1,1,1]")
        A("v_bitop3_b32 v94, v92, v93, s58 bitop3:0x96")
        A("v_mov_b32 v95, v94")
        A("buffer_store_dwordx4 v[92:95], v6, s[36:39], 0 offen sc1")
        for t in range(7):
            wot(t)
        X = 96
        loads = [f"buffer_load_dwordx4 v[{X+4*i}:{X+4*i+3}], v7, s[36:39], 0 offen offset:{i*1024} sc1" for i in range(4)]
        self.poll(loads, [[X + 4 * i, X + 4 * i + 1, X + 4 * i + 2] for i in range(4)], 112)
        self.stamp(6)
        vals = [X + 4 * i + k for i in range(4) for k in range(2)]
        self.row_allreduce("v_add_f32", vals)
        for i in range(4):
            A(f"v_cvt_pk_bf16_f32 v{116+i}, v{X+4*i}, v{X+4*i+1}")
        A("s_waitcnt lgkmcnt(0)")
        self.nop(1)
        for t in range(7):
            A(f"v_mfma_f32_16x16x32_bf16 v[{160+4*t}:{163+4*t}], v[116:119], v[{128+4*t}:{131+4*t}], 0")
        D = [160 + 4 * t for t in range(7)]
        self.nop(8)
        A(f"v_bitop3_b32 v123, v{D[0]}, v{D[1]}, s58 bitop3:0x96")
        A(f"v_bitop3_b32 v123, v123, v{D[2]}, v{D[3]} bitop3:0x96")
        A(f"v_bitop3_b32 v123, v123, v{D[4]}, v{D[5]} bitop3:0x96")
        A(f"v_xor_b32 v123, v123, v{D[6]}")
        for i in range(3):
            A(f"v_cndmask_b32_e64 v{120+i}, v{D[i]}, v{D[4+i]}, s[64:65]")
        A(f"v_cndmask_b32_e64 v123, v{D[3]}, v123, s[64:65]")
        A("s_mov_b32 exec_hi, 0")
        A("buffer_store_dwordx4 v[120:123], v8, s[36:39], 0 offen sc1")
        self.write_stamps()
        A("s_endpgm")

    def stream_setup(self):
        A = self.A
        self.srd(36, "s28", "s29", WS_USED)
        A("s_mov_b32 s64, 0xffff0000")
        A("s_mov_b32 s65, 0")
        A("s_lshl_b32 s68, s3, 12")
        A("v_lshlrev_b32 v4, 4, v14")
        A("v_add_u32 v4, s68, v4")
        A("v_lshrrev_b32 v61, 3, v0")
        A("v_and_b32 v62, 7, v0")
        A("v_lshlrev_b32 v2, 9, v61")
        A("v_lshl_or_b32 v2, v62, 4, v2")
        A("v_lshlrev_b32 v5, 4, v61")
        A("v_add_u32 v5, s68, v5")
        A("v_and_b32 v63, 1, v61")
        A("v_lshlrev_b32 v9, 10, v63")
        A("v_lshl_or_b32 v9, v13, 8, v9")
        A("v_lshl_or_b32 v9, v62, 5, v9")
        A("s_lshl_b32 s69, s3, 11")
        A(f"s_add_u32 s69, s69, {L_PART}")
        A("v_add_u32 v9, s69, v9")
        A("s_lshl_b32 s69, s3, 9")
        A(f"s_add_u32 s69, s69, {L_PART}")
        A("v_lshlrev_b32 v10, 3, v0")
        A("v_add_u32 v10, s69, v10")
        A("s_lshr_b32 s69, s3, 1")
        A("s_lshl_b32 s69, s69, 4")
        A(f"s_add_u32 s69, s69, {L_F}")
        A("v_mov_b32 v60, s69")
        A("s_lshl_b32 s69, s54, 4")
        A("s_lshl_b32 s71, s3, 2")
        A("s_add_u32 s69, s69, s71")
        A("s_lshl_b32 s69, s69, 12")
        A("s_lshl_b32 s71, s55, 6")
        A("s_add_u32 s69, s69, s71")
        A(f"s_add_u32 s69, s69, {W_H1:#x}")
        A("v_lshlrev_b32 v6, 12, v13")
        A("v_and_b32 v63, 3, v0")
        A("v_lshl_or_b32 v6, v63, 10, v6")
        A("v_bfe_u32 v63, v0, 2, 2")
        A("v_lshl_or_b32 v6, v63, 4, v6")
        A("v_add_u32 v6, s69, v6")
        A("s_lshl_b32 s69, s54, 4")
        A("s_add_u32 s69, s69, s55")
        A("s_lshl_b32 s69, s69, 12")
        A(f"s_add_u32 s69, s69, {W_H1:#x}")
        A("v_lshlrev_b32 v7, 6, v12")
        A("v_lshl_or_b32 v7, v13, 4, v7")
        A("v_add_u32 v7, s69, v7")
        A("s_lshl_b32 s69, s56, 6")
        A("s_lshl_b32 s71, s3, 4")
        A("s_add_u32 s69, s69, s71")
        A("s_lshl_b32 s69, s69, 12")
        A("s_lshl_b32 s71, s57, 4")
        A("s_add_u32 s71, s71, s55")
        A("s_lshl_b32 s71, s71, 4")
        A("s_add_u32 s69, s69, s71")
        A(f"s_add_u32 s69, s69, {W_H2:#x}")
        A("v_lshlrev_b32 v8, 12, v12")
        A("v_and_b32 v63, 1, v13")
        A("v_lshl_or_b32 v8, v63, 11, v8")
        A("v_add_u32 v8, s69, v8")
        A("v_lshrrev_b32 v63, 2, v12")
        A("v_lshl_add_u32 v63, v13, 3, v63")
        A("v_mul_u32_u24 v11, 896, v63")
        A("v_and_b32 v63, 3, v12")
        A("v_lshl_add_u32 v11, v63, 3, v11")
        A("s_mul_i32 s69, s3, 224")
        A(f"s_add_u32 s69, s69, {L_WO:#x}")
        A("v_add_u32 v11, s69, v11")
        A("v_and_b32 v63, 1, v14")
        A("v_lshlrev_b32 v12, 9, v63")
        A("v_lshl_or_b32 v12, v15, 6, v12")
        A("v_lshl_or_b32 v12, v13, 4, v12")
        A(f"v_add_u32 v12, {L_Q:#x}, v12")
        A(f"v_mov_b32 v13, {L_TAG:#x}")
        A("v_lshlrev_b32 v14, 4, v0")
        A("v_add_u32 v14, s68, v14")
        A("s_lshl_b32 s69, s3, 4")
        A(f"s_add_u32 s69, s69, {L_ST:#x}")
        A("v_mov_b32 v15, s69")

    def dma(self, vaddr, srd, soff, ldsaddr, fl=None):
        if fl is None:
            fl = self.p["wflags"]
            if "w" in self.p["abl"]:
                return
        A = self.A
        A(f"s_mov_b32 m0, {ldsaddr:#x}")
        if isinstance(soff, int):
            if soff == 0:
                so = "0"
                self.nop(1)
            else:
                A(f"s_mov_b32 s71, {soff:#x}")
                so = "s71"
        else:
            so = soff
            self.nop(1)
        A(f"buffer_load_dwordx4 v{vaddr}, s[{srd}:{srd+3}], {so} offen {fl} lds")

    def helper(self):
        A = self.A
        p = self.p
        A("s_setprio 3")
        A("v_and_b32 v12, 15, v0")
        A("v_lshrrev_b32 v13, 4, v0")
        A("s_and_b32 s66, s2, 7")
        A("s_lshr_b32 s67, s2, 5")
        A("s_lshl_b32 s67, s67, 3")
        A("s_or_b32 s66, s66, s67")
        A("s_lshl_b32 s66, s66, 2")
        A("s_bfe_u32 s67, s2, 0x20003")
        A("s_add_u32 s66, s66, s67")
        A("v_lshrrev_b32 v1, 1, v0")
        A("v_lshlrev_b32 v1, 13, v1")
        A("v_and_b32 v2, 1, v0")
        A("v_lshl_or_b32 v1, v2, 4, v1")
        A("s_lshl_b32 s67, s66, 5")
        A("v_add_u32 v1, s67, v1")
        A("v_lshlrev_b32 v2, 4, v0")
        A("s_waitcnt lgkmcnt(0)")
        A("s_load_dword s58, s[28:29], 0")
        self.srd(40, "s10", "s11", 448 * 8192)
        self.srd(44, "s4", "s5", 1792)
        for i in range(14):
            self.dma(1, 40, i * 0x40000, L_WQ + i * 1024, p["qflags"])
        self.dma(2, 44, 0, L_X, "")
        self.dma(2, 44, 1024, L_X + 1024, "")
        if p["cpref"]:
            A("s_getpc_b64 s[30:31]")
            self.lab("L_pc")
            A("s_lshr_b32 s71, s2, 3")
            A("s_lshl_b32 s71, s71, 10")
            A("s_min_u32 s71, s71, L_end-L_pc-1020")
            A("v_add_u32 v11, s71, v2")
            A("global_load_dwordx4 v[248:251], v11, s[30:31]")
        if p["b0"]:
            A("s_barrier")
        self.srd(36, "s28", "s29", WS_USED)
        A("v_lshrrev_b32 v5, 2, v12")
        A("v_lshl_add_u32 v5, v13, 3, v5")
        A("v_and_b32 v6, 3, v12")
        A("v_lshlrev_b32 v3, 5, v5")
        A("v_lshl_or_b32 v3, v6, 3, v3")
        A(f"v_add_u32 v3, {L_WQ:#x}, v3")
        A("v_and_b32 v7, 1, v12")
        A("v_mul_u32_u24 v4, 896, v7")
        A("v_lshl_add_u32 v4, v13, 4, v4")
        A(f"v_add_u32 v4, {L_X:#x}, v4")
        A("v_lshlrev_b32 v8, 14, v7")
        A("v_lshl_or_b32 v8, v13, 4, v8")
        A("s_lshl_b32 s67, s66, 6")
        A(f"s_add_u32 s67, s67, {W_Q:#x}")
        A("v_add_u32 v8, s67, v8")
        A("s_lshl_b32 s67, s54, 11")
        A(f"s_add_u32 s67, s67, {W_Q:#x}")
        A("v_add_u32 v9, s67, v2")
        A("v_lshlrev_b32 v10, 3, v0")
        A(f"v_add_u32 v10, {L_Q:#x}, v10")
        A("s_waitcnt lgkmcnt(0)")
        A("s_add_u32 s76, s58, 2")
        A("s_or_b32 s76, s76, 1")
        A("s_mul_i32 s58, s76, 0x9E3779B1")
        A("s_waitcnt vmcnt(0)")
        self.stamp(1)
        XB = 16
        WA = 72
        for s in range(14):
            A(f"ds_read_b128 v[{XB+4*s}:{XB+4*s+3}], v4 offset:{s*64}")
            A(f"ds_read_b64_tr_b16 v[{WA+4*s}:{WA+4*s+1}], v3 offset:{s*1024}")
            A(f"ds_read_b64_tr_b16 v[{WA+4*s+2}:{WA+4*s+3}], v3 offset:{s*1024+128}")
            if s >= 4:
                k = s - 4
                A("s_waitcnt lgkmcnt(12)")
                c = "0" if k == 0 else "v[128:131]"
                A(f"v_mfma_f32_16x16x32_bf16 v[128:131], v[{WA+4*k}:{WA+4*k+3}], v[{XB+4*k}:{XB+4*k+3}], {c}")
        for k in range(10, 14):
            A(f"s_waitcnt lgkmcnt({(13-k)*3})")
            A(f"v_mfma_f32_16x16x32_bf16 v[128:131], v[{WA+4*k}:{WA+4*k+3}], v[{XB+4*k}:{XB+4*k+3}], v[128:131]")
        self.nop(8)
        A("v_cvt_pk_bf16_f32 v132, v128, v129")
        A("v_cvt_pk_bf16_f32 v133, v130, v131")
        A("v_bitop3_b32 v134, v132, v133, s58 bitop3:0x96")
        A("v_mov_b32 v135, v134")
        A("s_mov_b32 s64, 0x00030003")
        A("s_mov_b32 s65, 0x00030003")
        A("s_mov_b64 exec, s[64:65]")
        A("buffer_store_dwordx4 v[132:135], v8, s[36:39], 0 offen sc1")
        A("s_mov_b64 exec, -1")
        self.stamp(2)
        loads = [f"buffer_load_dwordx4 v[{136+4*i}:{139+4*i}], v9, s[36:39], 0 offen offset:{i*1024} sc1" for i in range(2)]
        if "q" not in p["abl"]:
            self.poll(loads, [[136, 137, 138], [140, 141, 142]], 144)
        A("ds_write_b64 v10, v[136:137]")
        A("ds_write_b64 v10, v[140:141] offset:512")
        A("v_mov_b32 v144, s58")
        A(f"v_mov_b32 v145, {L_TAG:#x}")
        A("ds_write_b32 v145, v144")
        A("s_waitcnt lgkmcnt(0)")
        self.stamp(3)
        A("s_barrier")
        self.srd(40, "s12", "s13", 4096 * 896)
        A("s_lshl_b32 s67, s57, 4")
        A("s_add_u32 s67, s67, s55")
        A(f"s_mul_i32 s68, s67, 28672")
        for i in range(28):
            A(f"s_add_u32 s69, s68, {i*1024}")
            self.dma(2, 40, "s69", L_WO + i * 1024)
        A("s_and_b32 s68, s2, 7")
        A("s_lshr_b32 s69, s2, 6")
        A("s_lshl_b32 s69, s69, 3")
        A("s_add_u32 s68, s68, s69")
        A("s_cmp_ge_u32 s68, 28")
        A("s_cbranch_scc1 L_noffn")
        A("s_lshl_b32 s68, s68, 3")
        A("s_bfe_u32 s69, s2, 0x30003")
        A("s_add_u32 s77, s68, s69")
        A("v_mul_u32_u24 v1, 3584, v0")
        A("s_lshl_b32 s68, s77, 4")
        A("v_add_u32 v1, s68, v1")
        self.srd(40, "s16", "s17", 448 * 3584)
        self.srd(44, "s18", "s19", 448 * 3584)
        for i in range(7):
            self.dma(1, 40, i * 64 * 3584, L_W1 + i * 1024, p["fflags"])
            self.dma(1, 44, i * 64 * 3584, L_W3 + i * 1024, p["fflags"])
        self.srd(48, "s20", "s21", 1792 * 896)
        A("s_mul_i32 s68, s77, 7168")
        for i in range(7):
            A(f"s_add_u32 s69, s68, {i*1024}")
            self.dma(2, 48, "s69", L_W2 + i * 1024)
        A("v_lshrrev_b32 v8, 1, v6")
        A("v_mul_u32_u24 v3, 7168, v8")
        A("v_lshl_add_u32 v3, v5, 4, v3")
        A("v_and_b32 v8, 1, v6")
        A("v_lshl_add_u32 v3, v8, 3, v3")
        A(f"v_add_u32 v3, {L_W1:#x}, v3")
        A("s_waitcnt vmcnt(0)")
        for s in range(14):
            A(f"ds_read_b64_tr_b16 v[{WA+4*s}:{WA+4*s+1}], v3 offset:{s*512}")
            A(f"ds_read_b64_tr_b16 v[{WA+4*s+2}:{WA+4*s+3}], v3 offset:{s*512+64}")
            if s % 7 == 6:
                A("s_waitcnt lgkmcnt(0)")
        for k in range(14):
            c = "0" if k == 0 else "v[128:131]"
            A(f"v_mfma_f32_16x16x32_bf16 v[128:131], v[{WA+4*k}:{WA+4*k+3}], v[{XB+4*k}:{XB+4*k+3}], {c}")
        A("v_and_b32 v8, 1, v13")
        A("v_lshrrev_b32 v9, 2, v12")
        A("v_lshl_add_u32 v8, v8, 2, v9")
        A("v_mul_u32_u24 v3, 896, v8")
        A("v_lshl_add_u32 v3, v6, 3, v3")
        A(f"v_add_u32 v3, {L_W2:#x}, v3")
        for t in range(28):
            A(f"ds_read_b64_tr_b16 v[{144+2*t}:{145+2*t}], v3 offset:{t*32}")
            if t % 14 == 13:
                A("s_waitcnt lgkmcnt(0)")
        for i in range(4):
            self.round_bf16(128 + i)
        for i in range(4):
            A(f"v_mov_b32 v{132+i}, v{128+i}")
        self.nop(2)
        for i in range(4):
            A(f"v_permlane32_swap_b32 v{128+i}, v{132+i}")
        self.nop(1)
        for i in range(4):
            A(f"v_mul_f32 v{136+i}, {f2u(-LOG2E):#x}, v{128+i}")
        for i in range(4):
            A(f"v_exp_f32 v{136+i}, v{136+i}")
        self.nop(1)
        for i in range(4):
            A(f"v_add_f32 v{136+i}, 1.0, v{136+i}")
        for i in range(4):
            A(f"v_rcp_f32 v{136+i}, v{136+i}")
        self.nop(1)
        for i in range(4):
            A(f"v_mul_f32 v{128+i}, v{128+i}, v{136+i}")
        for i in range(4):
            self.round_bf16(128 + i)
        for i in range(4):
            A(f"v_mul_f32 v{128+i}, v{128+i}, v{132+i}")
        A("v_cvt_pk_bf16_f32 v128, v128, v129")
        A("v_cvt_pk_bf16_f32 v129, v130, v131")
        for u in range(4):
            m16 = 0xf << (4 * u)
            A(f"s_mov_b32 s64, {m16 | (m16 << 16):#x}")
            A("s_mov_b32 s65, 0")
            A(f"v_cndmask_b32_e64 v{132+2*u}, 0, v128, s[64:65]")
            A(f"v_cndmask_b32_e64 v{133+2*u}, 0, v129, s[64:65]")
        self.nop(2)
        DB = 200
        for u in range(4):
            for t in range(7):
                c = "0" if u == 0 else f"v[{DB+4*t}:{DB+4*t+3}]"
                tl = 7 * u + t
                A(f"v_mfma_f32_16x16x16_bf16 v[{DB+4*t}:{DB+4*t+3}], v[{132+2*u}:{133+2*u}], v[{144+2*tl}:{145+2*tl}], {c}")
        A("v_lshlrev_b32 v8, 13, v0")
        A("s_lshl_b32 s68, s77, 4")
        A(f"s_add_u32 s68, s68, {W_BP:#x}")
        A("v_add_u32 v8, s68, v8")
        self.nop(8)
        for b in range(2):
            o = 232 + 8 * b
            for t in range(7):
                A(f"v_mov_b32 v{o+t}, v{DB+4*t+b}")
            A(f"v_bitop3_b32 v{o+7}, v{o}, v{o+1}, s58 bitop3:0x96")
            A(f"v_bitop3_b32 v{o+7}, v{o+7}, v{o+2}, v{o+3} bitop3:0x96")
            A(f"v_bitop3_b32 v{o+7}, v{o+7}, v{o+4}, v{o+5} bitop3:0x96")
            A(f"v_xor_b32 v{o+7}, v{o+7}, v{o+6}")
            A(f"s_mov_b32 s68, {b*64*8192:#x}")
            A(f"s_mov_b32 s69, {b*64*8192+4096:#x}")
            A(f"buffer_store_dwordx4 v[{o}:{o+3}], v8, s[36:39], s68 offen sc1")
            A(f"buffer_store_dwordx4 v[{o+4}:{o+7}], v8, s[36:39], s69 offen sc1")
        self.lab("L_noffn")
        self.srd(44, "s22", "s23", 896)
        A("buffer_load_dwordx4 v[128:131], v2, s[44:47], 0 offen")
        A("s_mul_i32 s68, s56, 896")
        A(f"s_add_u32 s68, s68, {L_X:#x}")
        A("v_add_u32 v8, s68, v2")
        A("ds_read_b128 v[132:135], v8")
        A("s_waitcnt vmcnt(0) lgkmcnt(0)")
        for d in range(4):
            A(f"v_lshlrev_b32 v136, 16, v{128+d}")
            A(f"v_and_b32 v137, s62, v{128+d}")
            A(f"v_lshlrev_b32 v138, 16, v{132+d}")
            A(f"v_and_b32 v139, s62, v{132+d}")
            A("v_mul_f32 v136, v136, v138")
            A("v_mul_f32 v137, v137, v139")
            A("v_cvt_pk_bf16_f32 v137, v136, v137")
            A("v_lshlrev_b32 v136, 16, v137")
            A("v_and_b32 v137, s62, v137")
            if d == 0:
                A("v_add_f32 v140, v136, v137")
            else:
                A("v_add_f32 v140, v140, v136")
                A("v_add_f32 v140, v140, v137")
        A("s_mov_b32 s64, -1")
        A("s_mov_b32 s65, 0x00ffffff")
        A("v_cndmask_b32_e64 v140, 0, v140, s[64:65]")
        self.row_allreduce("v_add_f32", [140])
        self.swap_allreduce("v_add_f32", [140], [141], 16)
        self.swap_allreduce("v_add_f32", [140], [141], 32)
        self.round_bf16(140)
        A(f"v_mul_f32 v140, {f2u(-LOG2E):#x}, v140")
        A("v_exp_f32 v140, v140")
        self.nop(1)
        A("v_add_f32 v140, 1.0, v140")
        A("v_rcp_f32 v14, v140")
        self.nop(1)
        self.round_bf16(14)
        A("v_sub_f32 v15, 1.0, v14")
        self.round_bf16(15)
        self.stamp(4)
        A("s_waitcnt vmcnt(0)")
        if "b2" not in p["abl"]:
            A("s_barrier")
        A("v_lshlrev_b32 v8, 3, v7")
        A(f"v_add_u32 v8, {L_ST:#x}, v8")
        for w in range(4):
            A(f"ds_read_b64 v[{128+2*w}:{129+2*w}], v8 offset:{w*16}")
        A("s_lshl_b32 s68, s54, 9")
        A(f"s_add_u32 s68, s68, {W_ST:#x}")
        A("s_lshl_b32 s69, s55, 5")
        A("s_add_u32 s69, s69, s68")
        A("v_lshlrev_b32 v9, 4, v7")
        A("v_add_u32 v9, s69, v9")
        A("v_and_b32 v10, 31, v0")
        A("v_lshlrev_b32 v10, 4, v10")
        A("v_add_u32 v10, s68, v10")
        A("s_waitcnt lgkmcnt(0)")
        A("v_max3_f32 v136, v128, v130, v132")
        A("v_max_f32 v136, v136, v134")
        for w in range(4):
            A(f"v_sub_f32 v{140+w}, v{128+2*w}, v136")
        for w in range(4):
            A(f"v_exp_f32 v{140+w}, v{140+w}")
        self.nop(1)
        A("v_mul_f32 v137, v140, v129")
        for w in range(1, 4):
            A(f"v_fmac_f32 v137, v{140+w}, v{129+2*w}")
        A("v_bitop3_b32 v138, v136, v137, s58 bitop3:0x96")
        A("v_mov_b32 v139, v138")
        A("s_mov_b64 exec, 3")
        A("buffer_store_dwordx4 v[136:139], v9, s[36:39], 0 offen sc1")
        A("s_mov_b64 exec, -1")
        self.poll(["buffer_load_dwordx4 v[144:147], v10, s[36:39], 0 offen sc1"], [[144, 145, 146]], 148, sleep=8)
        A("v_mov_b32 v148, v144")
        self.row_allreduce("v_max_f32", [148], steps=(8, 4, 2))
        self.swap_allreduce("v_max_f32", [148], [149], 16)
        A("v_sub_f32 v144, v144, v148")
        A("v_exp_f32 v144, v144")
        self.nop(1)
        A("v_mul_f32 v145, v145, v144")
        self.row_allreduce("v_add_f32", [145], steps=(8, 4, 2))
        self.swap_allreduce("v_add_f32", [145], [149], 16)
        A("v_rcp_f32 v145, v145")
        for w in range(4):
            A(f"v_sub_f32 v{140+w}, v{128+2*w}, v148")
        for w in range(4):
            A(f"v_exp_f32 v{140+w}, v{140+w}")
        self.nop(1)
        for w in range(4):
            A(f"v_mul_f32 v{140+w}, v{140+w}, v145")
        A("v_lshlrev_b32 v8, 4, v7")
        A(f"v_add_u32 v8, {L_F:#x}, v8")
        A("s_mov_b64 exec, 3")
        A("ds_write_b128 v8, v[140:143]")
        A("s_mov_b64 exec, -1")
        A("s_cmp_ge_u32 s67, 64")
        A("s_cbranch_scc1 L_notcons")
        A("s_lshl_b32 s68, s56, 6")
        A("s_add_u32 s68, s68, s67")
        A("s_lshl_b32 s69, s68, 13")
        A(f"s_add_u32 s69, s69, {W_BP:#x}")
        A("v_add_u32 v8, s69, v2")
        A("s_mov_b32 s78, 4096")
        A("s_mov_b32 s64, -1")
        A("s_mov_b32 s65, 0")
        loads = []
        groups = []
        for q in range(4):
            o = 128 + 8 * q
            loads.append(f"buffer_load_dwordx4 v[{o}:{o+3}], v8, s[36:39], 0 offen offset:{q*1024} sc1")
            loads.append(f"buffer_load_dwordx4 v[{o+4}:{o+7}], v8, s[36:39], s78 offen offset:{q*1024} sc1")
            regs = list(range(o, o + 8))
            groups.append((regs, "s[64:65]") if q == 3 else regs)
        self.poll(loads, groups, 160, sleep=8)
        for t in range(7):
            A(f"v_cndmask_b32_e64 v{152+t}, 0, v{152+t}, s[64:65]")
        for t in range(7):
            A(f"v_add_f32 v{128+t}, v{128+t}, v{136+t}")
            A(f"v_add_f32 v{144+t}, v{144+t}, v{152+t}")
        for t in range(7):
            A(f"v_add_f32 v{128+t}, v{128+t}, v{144+t}")
        self.reduce7(list(range(128, 135)), 135)
        self.round_bf16(128)
        A("v_mul_f32 v15, v15, v128")
        self.round_bf16(15)
        A("s_lshl_b32 s69, s68, 12")
        A(f"s_add_u32 s69, s69, {W_H2:#x}")
        A("v_add_u32 v8, s69, v2")
        self.srd(48, "s24", "s25", 1792)
        A("s_lshr_b32 s69, s67, 4")
        A("s_mul_i32 s69, s69, 112")
        A("s_and_b32 s71, s67, 15")
        A("s_add_u32 s69, s69, s71")
        A("s_lshl_b32 s69, s69, 1")
        A("s_mul_i32 s71, s56, 896")
        A("s_add_u32 s69, s69, s71")
        A("v_lshrrev_b32 v9, 3, v0")
        A("v_lshlrev_b32 v9, 5, v9")
        A("v_add_u32 v9, s69, v9")
        self.stamp(5)
        A("s_waitcnt lgkmcnt(0)")
        A("s_barrier")
        loads = []
        for q in range(2):
            o = 128 + 8 * q
            loads.append(f"buffer_load_dwordx4 v[{o}:{o+3}], v8, s[36:39], 0 offen offset:{q*1024} sc1")
            loads.append(f"buffer_load_dwordx4 v[{o+4}:{o+7}], v8, s[36:39], 0 offen offset:{2048+q*1024} sc1")
        self.poll(loads, [list(range(128, 136)), list(range(136, 144))], 160)
        self.stamp(6)
        for t in range(7):
            A(f"v_add_f32 v{128+t}, v{128+t}, v{136+t}")
        self.reduce7(list(range(128, 135)), 135)
        self.round_bf16(128)
        A("v_mul_f32 v128, v14, v128")
        self.round_bf16(128)
        A("v_add_f32 v128, v128, v15")
        A("v_cvt_pk_bf16_f32 v128, v128, v128")
        A("s_mov_b32 s64, 0x01010101")
        A("s_mov_b32 s65, 0x00010101")
        A("s_mov_b64 exec, s[64:65]")
        A("buffer_store_short v128, v9, s[48:51], 0 offen")
        A("s_cmp_lg_u32 s68, 0")
        A("s_cbranch_scc1 L_hend")
        A("s_mov_b64 exec, 1")
        A("v_mov_b32 v130, s76")
        A("v_mov_b32 v131, 0")
        A("buffer_store_dword v130, v131, s[36:39], 0 offen sc1")
        A("s_branch L_hend")
        self.lab("L_notcons")
        A("s_waitcnt lgkmcnt(0)")
        A("s_barrier")
        self.lab("L_hend")
        self.write_stamps()


if __name__ == "__main__":
    import json
    out = sys.argv[1]
    kw = json.loads(sys.argv[2]) if len(sys.argv) > 2 else {}
    open(out, "w").write(G(**kw).gen())
```

```python
import sys, math, struct

KNAME = "gated_mix__gqa_block_cached__glu_gated_swiglu__decode_kernel"

HEADER = """; Kernarg layout for this problem (104 bytes, ptrs only, base s[0:1]):
;   offset  96: d_ws      1073741824 bytes workspace (unspecified values whenever your kernel or launch list starts; a list's later launches find what earlier ones wrote)
"""

L_SC = 0x0000
L_Q = 0x4000
L_TAG = 0x4400
L_F = 0x4420
L_ST = 0x4480
L_X = 0x4800
L_PART = 0x5000
L_WQ = 0x7000
L_W1 = 0xA800
L_W3 = 0xC400
L_W2 = 0xE000
L_WO = 0x10000
LDS_BYTES = 0x17000

W_EPOCH = 0
W_Q = 0x1000
W_ST = 0x10000
W_H1 = 0x100000
W_H2 = 0x200000
W_BP = 0x300000
WS_USED = 0x400000

def f2u(f):
    return struct.unpack("<I", struct.pack("<f", f))[0]

LOG2E = 1.4426950408889634

class G:
    def __init__(self, **p):
        self.L = []
        self.p = dict(pace=10, stamps=False, round_scores=True, spin=0x40000, kflags="nt", vflags="nt",
                      mapping="x128", b0=True, wflags="", qflags="", abl="", cpref=True, fflags=None, dbgtime=False)
        self.p.update(p)
        self.nlab = 0
        self.nstamp = 0

    def A(self, s):
        self.L.append("    " + s)

    def lab(self, name):
        self.L.append(name + ":")

    def newlab(self, base):
        self.nlab += 1
        return f"L_{base}{self.nlab}"

    def nop(self, n):
        if n > 0:
            self.A(f"s_nop {n-1}")

    def stamp(self, k):
        if self.p["stamps"] or self.p["dbgtime"]:
            self.A(f"s_memrealtime s[{80+2*k}:{81+2*k}]")

    def write_stamps(self):
        A = self.A
        if self.p["dbgtime"]:
            self.stamp(7)
            A("s_mov_b64 exec, 1")
            A("s_waitcnt vmcnt(0) lgkmcnt(0)")
            A("s_not_b32 s80, s80")
            A("s_cmp_eq_u32 s3, 4")
            A("s_cselect_b32 s68, 32, 0")
            A("v_mov_b32 v12, s68")
            for k in range(8):
                A(f"v_mov_b32 v13, s{80+2*k}")
                A(f"global_atomic_umax v12, v13, s[26:27] offset:{4*k}")
            return
        if not self.p["stamps"]:
            return
        self.stamp(7)
        A("s_mov_b64 exec, -1")
        A("s_mul_i32 s68, s2, 5")
        A("s_add_u32 s68, s68, s3")
        A("s_lshl_b32 s69, s68, 4")
        A("s_add_u32 s69, s69, 0x20000000")
        A("s_lshl_b32 s68, s68, 7")
        A("s_add_u32 s68, s68, 0x21000000")
        A("s_waitcnt vmcnt(0) lgkmcnt(0)")
        A("v_mov_b32 v12, s69")
        A("v_mov_b32 v13, s68")
        for i in range(16):
            A(f"v_mov_b32 v{16+i}, s{80+i}")
        A("v_mov_b32 v32, s80"); A("v_mov_b32 v33, s81"); A("v_mov_b32 v34, s94"); A("v_mov_b32 v35, s95")
        A("s_mov_b64 exec, 1")
        A("global_store_dwordx4 v12, v[32:35], s[28:29]")
        for i in range(4):
            A(f"global_store_dwordx4 v13, v[{16+4*i}:{19+4*i}], s[28:29] offset:{16*i}")
        A("s_waitcnt vmcnt(0)")

    def row_allreduce(self, op, regs, steps=(8, 4, 2, 1)):
        A = self.A
        self.nop(2)
        for st in steps:
            for r in regs:
                A(f"{op}_dpp v{r}, v{r}, v{r} row_ror:{st} row_mask:0xf bank_mask:0xf")
            if len(regs) < 3:
                self.nop(3 - len(regs))

    def swap_allreduce(self, op, regs, tmps, which):
        A = self.A
        for r, t in zip(regs, tmps):
            A(f"v_mov_b32 v{t}, v{r}")
        self.nop(2)
        for r, t in zip(regs, tmps):
            A(f"v_permlane{which}_swap_b32 v{r}, v{t}")
        self.nop(1)
        for r, t in zip(regs, tmps):
            A(f"{op} v{r}, v{r}, v{t}")

    def round_bf16(self, r, t=None):
        A = self.A
        A(f"v_cvt_pk_bf16_f32 v{r}, v{r}, v{r}")
        A(f"v_and_b32 v{r}, s62, v{r}")

    def reduce7(self, v, z):
        A = self.A
        A(f"v_mov_b32 v{z}, 0")
        w = list(v) + [z]
        self.nop(2)
        for i in range(4):
            A(f"v_permlane32_swap_b32 v{w[i]}, v{w[i+4]}")
        self.nop(1)
        for i in range(4):
            A(f"v_add_f32 v{w[i]}, v{w[i]}, v{w[i+4]}")
        self.nop(2)
        for i in range(2):
            A(f"v_permlane16_swap_b32 v{w[i]}, v{w[i+2]}")
        self.nop(1)
        for i in range(2):
            A(f"v_add_f32 v{w[i]}, v{w[i]}, v{w[i+2]}")
        self.nop(2)
        A(f"v_add_f32_dpp v{w[0]}, v{w[0]}, v{w[0]} row_ror:8 row_mask:0xf bank_mask:0x3")
        A(f"v_add_f32_dpp v{w[0]}, v{w[1]}, v{w[1]} row_ror:8 row_mask:0xf bank_mask:0xc")
        self.nop(2)
        A(f"v_add_f32_dpp v{w[0]}, v{w[0]}, v{w[0]} row_half_mirror row_mask:0xf bank_mask:0xf")
        self.nop(2)
        A(f"v_add_f32_dpp v{w[0]}, v{w[0]}, v{w[0]} quad_perm:[1,0,3,2] row_mask:0xf bank_mask:0xf")
        self.nop(2)
        A(f"v_add_f32_dpp v{w[0]}, v{w[0]}, v{w[0]} quad_perm:[2,3,0,1] row_mask:0xf bank_mask:0xf")

    def srd(self, d, lo, hi, nbytes):
        A = self.A
        A(f"s_mov_b32 s{d}, {lo}")
        A(f"s_mov_b32 s{d+1}, {hi}")
        A(f"s_mov_b32 s{d+2}, {nbytes:#x}")
        A(f"s_mov_b32 s{d+3}, 0x00020000")

    def poll(self, loads, groups, tmp, sleep=0):
        A = self.A
        lp = self.newlab("poll")
        done = self.newlab("pdone")
        A(f"s_mov_b32 s70, {self.p['spin']:#x}")
        self.lab(lp)
        for l in loads:
            A(l)
        A("s_waitcnt vmcnt(0)")
        first = True
        for gi, g in enumerate(groups):
            mask = None
            if isinstance(g, tuple):
                g, mask = g
            regs = list(g)
            t = tmp + gi
            if len(regs) == 3:
                A(f"v_bitop3_b32 v{t}, v{regs[0]}, v{regs[1]}, v{regs[2]} bitop3:0x96")
            else:
                A(f"v_bitop3_b32 v{t}, v{regs[0]}, v{regs[1]}, v{regs[2]} bitop3:0x96")
                rest = regs[3:]
                while len(rest) >= 2:
                    A(f"v_bitop3_b32 v{t}, v{t}, v{rest[0]}, v{rest[1]} bitop3:0x96")
                    rest = rest[2:]
                if rest:
                    A(f"v_xor_b32 v{t}, v{t}, v{rest[0]}")
            dst = "s[72:73]" if first else "s[74:75]"
            A(f"v_cmp_ne_u32_e64 {dst}, s58, v{t}")
            if mask is not None:
                A(f"s_and_b64 {dst}, {dst}, {mask}")
            if not first:
                A("s_or_b64 s[72:73], s[72:73], s[74:75]")
            first = False
        A("s_cmp_eq_u64 s[72:73], 0")
        A(f"s_cbranch_scc1 {done}")
        if sleep:
            A(f"s_sleep {sleep}")
        A("s_sub_u32 s70, s70, 1")
        A("s_cmp_lg_u32 s70, 0")
        A(f"s_cbranch_scc1 {lp}")
        self.lab(done)

    def gen(self):
        A = self.A
        p = self.p
        L = self.L
        L.append(HEADER + f"; @launch grid=(256,1,1) block=(320,1,1) lds={LDS_BYTES}")
        L.append('.amdgcn_target "amdgcn-amd-amdhsa--gfx950"')
        L.append(".text")
        L.append(f".globl {KNAME}")
        L.append(".p2align 8")
        L.append(f".type {KNAME},@function")
        self.lab(KNAME)
        A("s_cmp_ge_u32 s2, 256")
        A("s_cbranch_scc1 L_end")
        A("s_load_dwordx16 s[4:19], s[0:1], 0")
        A("s_load_dwordx8 s[20:27], s[0:1], 64")
        A("s_load_dwordx2 s[28:29], s[0:1], 96")
        if p["dbgtime"]:
            for k in range(1, 8):
                A(f"s_mov_b32 s{80+2*k}, 0")
        self.stamp(0)
        A("v_lshrrev_b32 v1, 6, v0")
        A("v_and_b32 v0, 63, v0")
        A("v_readfirstlane_b32 s3, v1")
        if p["mapping"] == "x128":
            A("s_and_b32 s52, s2, 127")
            A("s_lshr_b32 s53, s2, 7")
        elif p["mapping"] == "x128b":
            A("s_and_b32 s52, s2, 7")
            A("s_lshl_b32 s52, s52, 4")
            A("s_bfe_u32 s53, s2, 0x40003")
            A("s_add_u32 s52, s52, s53")
            A("s_lshr_b32 s53, s2, 7")
        A("s_lshr_b32 s54, s52, 3")
        A("s_and_b32 s55, s52, 7")
        A("s_lshl_b32 s55, s55, 1")
        A("s_add_u32 s55, s55, s53")
        A("s_lshr_b32 s56, s54, 3")
        A("s_and_b32 s57, s54, 7")
        A("s_mov_b32 s62, 0xffff0000")
        A("s_cmp_lg_u32 s3, 4")
        A("s_cbranch_scc1 L_stream")
        self.helper()
        A("s_endpgm")
        self.lab("L_stream")
        self.stream()
        self.lab("L_end")
        A("s_endpgm")
        L.append('.section .rodata,"a"')
        L.append(".p2align 6")
        L.append(f".amdhsa_kernel {KNAME}")
        L.append("  .amdhsa_next_free_vgpr 256")
        L.append("  .amdhsa_next_free_sgpr 102")
        L.append("  .amdhsa_accum_offset 256")
        L.append("  .amdhsa_group_segment_fixed_size 0")
        L.append("  .amdhsa_kernarg_size 104")
        L.append("  .amdhsa_user_sgpr_count 2")
        L.append("  .amdhsa_user_sgpr_kernarg_segment_ptr 1")
        L.append("  .amdhsa_system_sgpr_workgroup_id_x 1")
        L.append("  .amdhsa_float_denorm_mode_32 3")
        L.append(".end_amdhsa_kernel")
        return "\n".join(L) + "\n"

    def ring(self, rp, s, j):
        return 128 + ((rp * 2 + s) * 4 + j) * 4

    def ld(self, rp, s, j, flags):
        r = self.ring(rp, s, j)
        sb = "s61" if s else "s60"
        self.A(f"buffer_load_dwordx4 v[{r}:{r+3}], v3, s[32:35], {sb} offen offset:{j*128} {flags}")

    def stream(self):
        A = self.A
        p = self.p
        A("v_and_b32 v12, 15, v0")
        A("v_lshrrev_b32 v13, 4, v0")
        A("v_lshrrev_b32 v14, 1, v12")
        A("v_lshlrev_b32 v1, 9, v14")
        A("v_and_b32 v15, 1, v12")
        A("v_lshl_or_b32 v1, v15, 6, v1")
        A("v_lshl_or_b32 v1, v13, 4, v1")
        A("v_mov_b32 v3, v1")
        A("s_lshl_b32 s66, s53, 2")
        A("s_add_u32 s66, s66, s3")
        A("s_lshl_b32 s66, s66, 13")
        A("s_lshl_b32 s67, s52, 21")
        A("s_mov_b32 s60, s66")
        A("s_mov_b32 s34, 0x200000")
        A("s_mov_b32 s35, 0x00020000")
        A("s_waitcnt lgkmcnt(0)")
        A("s_add_u32 s32, s6, s67")
        A("s_addc_u32 s33, s7, 0")
        if p["b0"]:
            A("s_barrier")
        n = 0
        for rp in range(4):
            A("s_add_u32 s61, s60, 4096")
            for s in range(2):
                for j in range(4):
                    if n >= p["pace"]:
                        A(f"s_waitcnt vmcnt({p['pace']-1})")
                    self.ld(rp, s, j, p["kflags"])
                    n += 1
                    if n == p["pace"]:
                        self.stream_setup()
            A("s_add_u32 s60, s60, 0x10000")
        self.stamp(1)
        A("s_barrier")
        for j in range(4):
            A(f"ds_read_b128 v[{16+4*j}:{19+4*j}], v12 offset:{j*128}")
        A(f"ds_read_b32 v13, v13")
        A("s_mov_b32 s59, 0")
        A("s_waitcnt lgkmcnt(0)")
        A("v_readfirstlane_b32 s58, v13")
        self.stamp(2)
        self.lab("L_kloop")
        A("s_cmp_lg_u32 s59, 7")
        A("s_cbranch_scc1 L_knosw")
        A("s_add_u32 s32, s8, s67")
        A("s_addc_u32 s33, s9, 0")
        A("s_mov_b32 s60, s66")
        A("v_mov_b32 v3, v2")
        self.lab("L_knosw")
        for rp in range(4):
            A("s_add_u32 s61, s60, 4096")
            for s in range(2):
                d = 32 + 4 * s
                for j in range(4):
                    r = self.ring(rp, s, j)
                    A("s_waitcnt vmcnt(31)")
                    c = "0" if j == 0 else f"v[{d}:{d+3}]"
                    A(f"v_mfma_f32_16x16x32_bf16 v[{d}:{d+3}], v[{16+4*j}:{19+4*j}], v[{r}:{r+3}], {c}")
                    self.ld(rp, s, j, p["kflags"])
                self.nop(8)
                t = 40 + 2 * s
                A(f"v_add_f32_dpp v{t}, v{d+1}, v{d} quad_perm:[1,1,3,3] row_mask:0xf bank_mask:0xf")
                A(f"v_add_f32_dpp v{t+1}, v{d+3}, v{d+2} quad_perm:[1,1,3,3] row_mask:0xf bank_mask:0xf")
                if s == 1:
                    A("s_mov_b64 exec, 0x5555")
                    A(f"ds_write_b128 v4, v[40:43] offset:{rp*128}")
                    A("s_mov_b64 exec, -1")
            A("s_add_u32 s60, s60, 0x10000")
        A("v_add_u32 v4, 512, v4")
        A("s_add_u32 s59, s59, 1")
        A("s_cmp_lt_u32 s59, 8")
        A("s_cbranch_scc1 L_kloop")
        self.stamp(3)
        S = 64
        A("s_waitcnt lgkmcnt(0)")
        for i in range(4):
            A(f"ds_read_b128 v[{S+4*i}:{S+4*i+3}], v14 offset:{i*1024}")
        A(f"s_mov_b32 s63, {f2u(LOG2E/16):#x}")
        A("s_waitcnt lgkmcnt(0)")
        if p["round_scores"]:
            for i in range(8):
                a, b = S + 2 * i, S + 2 * i + 1
                A(f"v_cvt_pk_bf16_f32 v{b}, v{a}, v{b}")
                A(f"v_lshlrev_b32 v{a}, 16, v{b}")
                A(f"v_and_b32 v{b}, s62, v{b}")
        m = [84, 86]
        for h in range(2):
            A(f"v_max3_f32 v{m[h]}, v{S+h}, v{S+2+h}, v{S+4+h}")
            A(f"v_max3_f32 v{m[h]}, v{m[h]}, v{S+6+h}, v{S+8+h}")
            A(f"v_max3_f32 v{m[h]}, v{m[h]}, v{S+10+h}, v{S+12+h}")
            A(f"v_max_f32 v{m[h]}, v{m[h]}, v{S+14+h}")
        self.row_allreduce("v_max_f32", m)
        self.swap_allreduce("v_max_f32", m, [88, 89], 16)
        self.swap_allreduce("v_max_f32", m, [88, 89], 32)
        for h in range(2):
            A(f"v_mul_f32 v{m[h]}, s63, v{m[h]}")
        for i in range(16):
            A(f"v_fma_f32 v{S+i}, v{S+i}, s63, -v{m[i&1]}")
        for i in range(16):
            A(f"v_exp_f32 v{S+i}, v{S+i}")
        l = [85, 87]
        self.nop(1)
        for i in range(4):
            A(f"ds_write_b128 v14, v[{S+4*i}:{S+4*i+3}] offset:{i*1024}")
        for h in range(2):
            A(f"v_add_f32 v{l[h]}, v{S+h}, v{S+2+h}")
            for i in range(2, 8):
                A(f"v_add_f32 v{l[h]}, v{l[h]}, v{S+2*i+h}")
        self.row_allreduce("v_add_f32", l)
        self.swap_allreduce("v_add_f32", l, [88, 89], 16)
        self.swap_allreduce("v_add_f32", l, [88, 89], 32)
        A("s_mov_b64 exec, 1")
        A("ds_write_b128 v15, v[84:87]")
        A("s_mov_b64 exec, -1")
        A("s_waitcnt lgkmcnt(0)")
        A("ds_read_b128 v[44:47], v5")
        if "b2" not in p["abl"]:
            A("s_barrier")
        for i in range(64):
            A(f"v_mov_b32 v{64+i}, 0")
        A("s_mov_b32 s59, 0")
        self.stamp(4)
        def vbody(last):
            n = 0
            for rp in range(4):
                P = 44 + 4 * (rp & 1)
                Pn = 44 + 4 * ((rp + 1) & 1)
                if not last:
                    A("s_add_u32 s61, s60, 4096")
                A("s_waitcnt lgkmcnt(0)")
                if not (last and rp == 3):
                    A(f"ds_read_b128 v[{Pn}:{Pn+3}], v5 offset:{(rp+1)*128}")
                for s in range(2):
                    for j in range(4):
                        r = self.ring(rp, s, j)
                        A(f"s_waitcnt vmcnt({31 - n if last else 31})")
                        n += 1
                        for d in range(4):
                            A(f"v_lshlrev_b32 v{52+2*d}, 16, v{r+d}")
                            A(f"v_and_b32 v{53+2*d}, s62, v{r+d}")
                        if not last:
                            self.ld(rp, s, j, p["vflags"])
                        for h in range(2):
                            for d in range(4):
                                a = 64 + j * 16 + h * 8 + 2 * d
                                A(f"v_pk_fma_f32 v[{a}:{a+1}], v[{52+2*d}:{53+2*d}], v[{P+2*s}:{P+2*s+1}], v[{a}:{a+1}] op_sel:[0,{h},0] op_sel_hi:[1,{h},1]")
                if not last:
                    A("s_add_u32 s60, s60, 0x10000")
        self.lab("L_vloop")
        vbody(False)
        A("v_add_u32 v5, 512, v5")
        A("s_add_u32 s59, s59, 1")
        A("s_cmp_lt_u32 s59, 7")
        A("s_cbranch_scc1 L_vloop")
        vbody(True)
        self.stamp(5)
        acc = lambda j, h, e: 64 + j * 16 + h * 8 + e
        self.nop(2)
        prs = [(acc(j, h, e), acc(j + 2, h, e)) for j in range(2) for h in range(2) for e in range(8)]
        for a, b in prs:
            A(f"v_permlane32_swap_b32 v{a}, v{b}")
        for a, b in prs:
            A(f"v_add_f32 v{a}, v{a}, v{b}")
        prs = [(acc(0, h, e), acc(1, h, e)) for h in range(2) for e in range(8)]
        self.nop(2)
        for a, b in prs:
            A(f"v_permlane16_swap_b32 v{a}, v{b}")
        for a, b in prs:
            A(f"v_add_f32 v{a}, v{a}, v{b}")
        self.nop(2)
        for e in range(8):
            a, b = acc(0, 0, e), acc(0, 1, e)
            A(f"v_add_f32_dpp v{a}, v{a}, v{a} row_ror:8 row_mask:0xf bank_mask:0x3")
        for e in range(8):
            a, b = acc(0, 0, e), acc(0, 1, e)
            A(f"v_add_f32_dpp v{a}, v{b}, v{b} row_ror:8 row_mask:0xf bank_mask:0xc")
        A("ds_write_b128 v9, v[64:67]")
        A("ds_write_b128 v9, v[68:71] offset:16")
        A("s_waitcnt lgkmcnt(0)")
        A("s_barrier")
        for w in range(4):
            A(f"ds_read_b64 v[{80+2*w}:{81+2*w}], v10 offset:{w*2048}")
        A("ds_read_b128 v[88:91], v60")
        def wot(t):
            A(f"ds_read_b64_tr_b16 v[{128+4*t}:{129+4*t}], v11 offset:{t*32}")
            A(f"ds_read_b64_tr_b16 v[{130+4*t}:{131+4*t}], v11 offset:{t*32+4*896}")
        A("s_waitcnt lgkmcnt(0)")
        A("v_pk_mul_f32 v[92:93], v[80:81], v[88:89] op_sel:[0,0] op_sel_hi:[1,0]")
        A("v_pk_fma_f32 v[92:93], v[82:83], v[88:89], v[92:93] op_sel:[0,1,0] op_sel_hi:[1,1,1]")
        A("v_pk_fma_f32 v[92:93], v[84:85], v[90:91], v[92:93] op_sel:[0,0,0] op_sel_hi:[1,0,1]")
        A("v_pk_fma_f32 v[92:93], v[86:87], v[90:91], v[92:93] op_sel:[0,1,0] op_sel_hi:[1,1,1]")
        A("v_bitop3_b32 v94, v92, v93, s58 bitop3:0x96")
        A("v_mov_b32 v95, v94")
        A("buffer_store_dwordx4 v[92:95], v6, s[36:39], 0 offen sc1")
        for t in range(7):
            wot(t)
        X = 96
        loads = [f"buffer_load_dwordx4 v[{X+4*i}:{X+4*i+3}], v7, s[36:39], 0 offen offset:{i*1024} sc1" for i in range(4)]
        self.poll(loads, [[X + 4 * i, X + 4 * i + 1, X + 4 * i + 2] for i in range(4)], 112)
        self.stamp(6)
        vals = [X + 4 * i + k for i in range(4) for k in range(2)]
        self.row_allreduce("v_add_f32", vals)
        for i in range(4):
            A(f"v_cvt_pk_bf16_f32 v{116+i}, v{X+4*i}, v{X+4*i+1}")
        A("s_waitcnt lgkmcnt(0)")
        self.nop(1)
        for t in range(7):
            A(f"v_mfma_f32_16x16x32_bf16 v[{160+4*t}:{163+4*t}], v[116:119], v[{128+4*t}:{131+4*t}], 0")
        D = [160 + 4 * t for t in range(7)]
        self.nop(8)
        A(f"v_bitop3_b32 v123, v{D[0]}, v{D[1]}, s58 bitop3:0x96")
        A(f"v_bitop3_b32 v123, v123, v{D[2]}, v{D[3]} bitop3:0x96")
        A(f"v_bitop3_b32 v123, v123, v{D[4]}, v{D[5]} bitop3:0x96")
        A(f"v_xor_b32 v123, v123, v{D[6]}")
        for i in range(3):
            A(f"v_cndmask_b32_e64 v{120+i}, v{D[i]}, v{D[4+i]}, s[64:65]")
        A(f"v_cndmask_b32_e64 v123, v{D[3]}, v123, s[64:65]")
        A("s_mov_b32 exec_hi, 0")
        A("buffer_store_dwordx4 v[120:123], v8, s[36:39], 0 offen sc1")
        self.write_stamps()
        A("s_endpgm")

    def stream_setup(self):
        A = self.A
        self.srd(36, "s28", "s29", WS_USED)
        A("s_mov_b32 s64, 0xffff0000")
        A("s_mov_b32 s65, 0")
        A("s_lshl_b32 s68, s3, 12")
        A("v_lshlrev_b32 v4, 4, v14")
        A("v_add_u32 v4, s68, v4")
        A("v_lshrrev_b32 v61, 3, v0")
        A("v_and_b32 v62, 7, v0")
        A("v_lshlrev_b32 v2, 9, v61")
        A("v_lshl_or_b32 v2, v62, 4, v2")
        A("v_lshlrev_b32 v5, 4, v61")
        A("v_add_u32 v5, s68, v5")
        A("v_and_b32 v63, 1, v61")
        A("v_lshlrev_b32 v9, 10, v63")
        A("v_lshl_or_b32 v9, v13, 8, v9")
        A("v_lshl_or_b32 v9, v62, 5, v9")
        A("s_lshl_b32 s69, s3, 11")
        A(f"s_add_u32 s69, s69, {L_PART}")
        A("v_add_u32 v9, s69, v9")
        A("s_lshl_b32 s69, s3, 9")
        A(f"s_add_u32 s69, s69, {L_PART}")
        A("v_lshlrev_b32 v10, 3, v0")
        A("v_add_u32 v10, s69, v10")
        A("s_lshr_b32 s69, s3, 1")
        A("s_lshl_b32 s69, s69, 4")
        A(f"s_add_u32 s69, s69, {L_F}")
        A("v_mov_b32 v60, s69")
        A("s_lshl_b32 s69, s54, 4")
        A("s_lshl_b32 s71, s3, 2")
        A("s_add_u32 s69, s69, s71")
        A("s_lshl_b32 s69, s69, 12")
        A("s_lshl_b32 s71, s55, 6")
        A("s_add_u32 s69, s69, s71")
        A(f"s_add_u32 s69, s69, {W_H1:#x}")
        A("v_lshlrev_b32 v6, 12, v13")
        A("v_and_b32 v63, 3, v0")
        A("v_lshl_or_b32 v6, v63, 10, v6")
        A("v_bfe_u32 v63, v0, 2, 2")
        A("v_lshl_or_b32 v6, v63, 4, v6")
        A("v_add_u32 v6, s69, v6")
        A("s_lshl_b32 s69, s54, 4")
        A("s_add_u32 s69, s69, s55")
        A("s_lshl_b32 s69, s69, 12")
        A(f"s_add_u32 s69, s69, {W_H1:#x}")
        A("v_lshlrev_b32 v7, 6, v12")
        A("v_lshl_or_b32 v7, v13, 4, v7")
        A("v_add_u32 v7, s69, v7")
        A("s_lshl_b32 s69, s56, 6")
        A("s_lshl_b32 s71, s3, 4")
        A("s_add_u32 s69, s69, s71")
        A("s_lshl_b32 s69, s69, 12")
        A("s_lshl_b32 s71, s57, 4")
        A("s_add_u32 s71, s71, s55")
        A("s_lshl_b32 s71, s71, 4")
        A("s_add_u32 s69, s69, s71")
        A(f"s_add_u32 s69, s69, {W_H2:#x}")
        A("v_lshlrev_b32 v8, 12, v12")
        A("v_and_b32 v63, 1, v13")
        A("v_lshl_or_b32 v8, v63, 11, v8")
        A("v_add_u32 v8, s69, v8")
        A("v_lshrrev_b32 v63, 2, v12")
        A("v_lshl_add_u32 v63, v13, 3, v63")
        A("v_mul_u32_u24 v11, 896, v63")
        A("v_and_b32 v63, 3, v12")
        A("v_lshl_add_u32 v11, v63, 3, v11")
        A("s_mul_i32 s69, s3, 224")
        A(f"s_add_u32 s69, s69, {L_WO:#x}")
        A("v_add_u32 v11, s69, v11")
        A("v_and_b32 v63, 1, v14")
        A("v_lshlrev_b32 v12, 9, v63")
        A("v_lshl_or_b32 v12, v15, 6, v12")
        A("v_lshl_or_b32 v12, v13, 4, v12")
        A(f"v_add_u32 v12, {L_Q:#x}, v12")
        A(f"v_mov_b32 v13, {L_TAG:#x}")
        A("v_lshlrev_b32 v14, 4, v0")
        A("v_add_u32 v14, s68, v14")
        A("s_lshl_b32 s69, s3, 4")
        A(f"s_add_u32 s69, s69, {L_ST:#x}")
        A("v_mov_b32 v15, s69")

    def dma(self, vaddr, srd, soff, ldsaddr, fl=None):
        if fl is None:
            fl = self.p["wflags"]
            if "w" in self.p["abl"]:
                return
        A = self.A
        A(f"s_mov_b32 m0, {ldsaddr:#x}")
        if isinstance(soff, int):
            if soff == 0:
                so = "0"
                self.nop(1)
            else:
                A(f"s_mov_b32 s71, {soff:#x}")
                so = "s71"
        else:
            so = soff
            self.nop(1)
        A(f"buffer_load_dwordx4 v{vaddr}, s[{srd}:{srd+3}], {so} offen {fl} lds")

    def helper(self):
        A = self.A
        p = self.p
        A("s_setprio 3")
        A("v_and_b32 v12, 15, v0")
        A("v_lshrrev_b32 v13, 4, v0")
        A("s_and_b32 s66, s2, 7")
        A("s_lshr_b32 s67, s2, 5")
        A("s_lshl_b32 s67, s67, 3")
        A("s_or_b32 s66, s66, s67")
        A("s_lshl_b32 s66, s66, 2")
        A("s_bfe_u32 s67, s2, 0x20003")
        A("s_add_u32 s66, s66, s67")
        A("v_lshrrev_b32 v1, 1, v0")
        A("v_lshlrev_b32 v1, 13, v1")
        A("v_and_b32 v2, 1, v0")
        A("v_lshl_or_b32 v1, v2, 4, v1")
        A("s_lshl_b32 s67, s66, 5")
        A("v_add_u32 v1, s67, v1")
        A("v_lshlrev_b32 v2, 4, v0")
        A("s_waitcnt lgkmcnt(0)")
        A("s_load_dword s58, s[28:29], 0")
        self.srd(40, "s10", "s11", 448 * 8192)
        self.srd(44, "s4", "s5", 1792)
        for i in range(14):
            self.dma(1, 40, i * 0x40000, L_WQ + i * 1024, p["qflags"])
        self.dma(2, 44, 0, L_X, "")
        self.dma(2, 44, 1024, L_X + 1024, "")
        if p["cpref"]:
            A("s_getpc_b64 s[30:31]")
            self.lab("L_pc")
            A("s_lshr_b32 s71, s2, 3")
            A("s_lshl_b32 s71, s71, 10")
            A("s_min_u32 s71, s71, L_end-L_pc-1020")
            A("v_add_u32 v11, s71, v2")
            A("global_load_dwordx4 v[248:251], v11, s[30:31]")
        if p["b0"]:
            A("s_barrier")
        self.srd(36, "s28", "s29", WS_USED)
        A("v_lshrrev_b32 v5, 2, v12")
        A("v_lshl_add_u32 v5, v13, 3, v5")
        A("v_and_b32 v6, 3, v12")
        A("v_lshlrev_b32 v3, 5, v5")
        A("v_lshl_or_b32 v3, v6, 3, v3")
        A(f"v_add_u32 v3, {L_WQ:#x}, v3")
        A("v_and_b32 v7, 1, v12")
        A("v_mul_u32_u24 v4, 896, v7")
        A("v_lshl_add_u32 v4, v13, 4, v4")
        A(f"v_add_u32 v4, {L_X:#x}, v4")
        A("v_lshlrev_b32 v8, 14, v7")
        A("v_lshl_or_b32 v8, v13, 4, v8")
        A("s_lshl_b32 s67, s66, 6")
        A(f"s_add_u32 s67, s67, {W_Q:#x}")
        A("v_add_u32 v8, s67, v8")
        A("s_lshl_b32 s67, s54, 11")
        A(f"s_add_u32 s67, s67, {W_Q:#x}")
        A("v_add_u32 v9, s67, v2")
        A("v_lshlrev_b32 v10, 3, v0")
        A(f"v_add_u32 v10, {L_Q:#x}, v10")
        A("s_waitcnt lgkmcnt(0)")
        A("s_add_u32 s76, s58, 2")
        A("s_or_b32 s76, s76, 1")
        A("s_mul_i32 s58, s76, 0x9E3779B1")
        A("s_waitcnt vmcnt(0)")
        self.stamp(1)
        XB = 16
        WA = 72
        for s in range(14):
            A(f"ds_read_b128 v[{XB+4*s}:{XB+4*s+3}], v4 offset:{s*64}")
            A(f"ds_read_b64_tr_b16 v[{WA+4*s}:{WA+4*s+1}], v3 offset:{s*1024}")
            A(f"ds_read_b64_tr_b16 v[{WA+4*s+2}:{WA+4*s+3}], v3 offset:{s*1024+128}")
            if s >= 4:
                k = s - 4
                A("s_waitcnt lgkmcnt(12)")
                c = "0" if k == 0 else "v[128:131]"
                A(f"v_mfma_f32_16x16x32_bf16 v[128:131], v[{WA+4*k}:{WA+4*k+3}], v[{XB+4*k}:{XB+4*k+3}], {c}")
        for k in range(10, 14):
            A(f"s_waitcnt lgkmcnt({(13-k)*3})")
            A(f"v_mfma_f32_16x16x32_bf16 v[128:131], v[{WA+4*k}:{WA+4*k+3}], v[{XB+4*k}:{XB+4*k+3}], v[128:131]")
        self.nop(8)
        A("v_cvt_pk_bf16_f32 v132, v128, v129")
        A("v_cvt_pk_bf16_f32 v133, v130, v131")
        A("v_bitop3_b32 v134, v132, v133, s58 bitop3:0x96")
        A("v_mov_b32 v135, v134")
        A("s_mov_b32 s64, 0x00030003")
        A("s_mov_b32 s65, 0x00030003")
        A("s_mov_b64 exec, s[64:65]")
        A("buffer_store_dwordx4 v[132:135], v8, s[36:39], 0 offen sc1")
        A("s_mov_b64 exec, -1")
        self.stamp(2)
        loads = [f"buffer_load_dwordx4 v[{136+4*i}:{139+4*i}], v9, s[36:39], 0 offen offset:{i*1024} sc1" for i in range(2)]
        if "q" not in p["abl"]:
            self.poll(loads, [[136, 137, 138], [140, 141, 142]], 144)
        A("ds_write_b64 v10, v[136:137]")
        A("ds_write_b64 v10, v[140:141] offset:512")
        A("v_mov_b32 v144, s58")
        A(f"v_mov_b32 v145, {L_TAG:#x}")
        A("ds_write_b32 v145, v144")
        A("s_waitcnt lgkmcnt(0)")
        self.stamp(3)
        A("s_barrier")
        self.srd(40, "s12", "s13", 4096 * 896)
        A("s_lshl_b32 s67, s57, 4")
        A("s_add_u32 s67, s67, s55")
        A(f"s_mul_i32 s68, s67, 28672")
        for i in range(28):
            A(f"s_add_u32 s69, s68, {i*1024}")
            self.dma(2, 40, "s69", L_WO + i * 1024)
        A("s_and_b32 s68, s2, 7")
        A("s_lshr_b32 s69, s2, 6")
        A("s_lshl_b32 s69, s69, 3")
        A("s_add_u32 s68, s68, s69")
        A("s_cmp_ge_u32 s68, 28")
        A("s_cbranch_scc1 L_noffn")
        A("s_lshl_b32 s68, s68, 3")
        A("s_bfe_u32 s69, s2, 0x30003")
        A("s_add_u32 s77, s68, s69")
        A("v_mul_u32_u24 v1, 3584, v0")
        A("s_lshl_b32 s68, s77, 4")
        A("v_add_u32 v1, s68, v1")
        self.srd(40, "s16", "s17", 448 * 3584)
        self.srd(44, "s18", "s19", 448 * 3584)
        for i in range(7):
            self.dma(1, 40, i * 64 * 3584, L_W1 + i * 1024, p["fflags"])
            self.dma(1, 44, i * 64 * 3584, L_W3 + i * 1024, p["fflags"])
        self.srd(48, "s20", "s21", 1792 * 896)
        A("s_mul_i32 s68, s77, 7168")
        for i in range(7):
            A(f"s_add_u32 s69, s68, {i*1024}")
            self.dma(2, 48, "s69", L_W2 + i * 1024)
        A("v_lshrrev_b32 v8, 1, v6")
        A("v_mul_u32_u24 v3, 7168, v8")
        A("v_lshl_add_u32 v3, v5, 4, v3")
        A("v_and_b32 v8, 1, v6")
        A("v_lshl_add_u32 v3, v8, 3, v3")
        A(f"v_add_u32 v3, {L_W1:#x}, v3")
        A("s_waitcnt vmcnt(0)")
        for s in range(14):
            A(f"ds_read_b64_tr_b16 v[{WA+4*s}:{WA+4*s+1}], v3 offset:{s*512}")
            A(f"ds_read_b64_tr_b16 v[{WA+4*s+2}:{WA+4*s+3}], v3 offset:{s*512+64}")
            if s % 7 == 6:
                A("s_waitcnt lgkmcnt(0)")
        for k in range(14):
            c = "0" if k == 0 else "v[128:131]"
            A(f"v_mfma_f32_16x16x32_bf16 v[128:131], v[{WA+4*k}:{WA+4*k+3}], v[{XB+4*k}:{XB+4*k+3}], {c}")
        A("v_and_b32 v8, 1, v13")
        A("v_lshrrev_b32 v9, 2, v12")
        A("v_lshl_add_u32 v8, v8, 2, v9")
        A("v_mul_u32_u24 v3, 896, v8")
        A("v_lshl_add_u32 v3, v6, 3, v3")
        A(f"v_add_u32 v3, {L_W2:#x}, v3")
        for t in range(28):
            A(f"ds_read_b64_tr_b16 v[{144+2*t}:{145+2*t}], v3 offset:{t*32}")
            if t % 14 == 13:
                A("s_waitcnt lgkmcnt(0)")
        for i in range(4):
            self.round_bf16(128 + i)
        for i in range(4):
            A(f"v_mov_b32 v{132+i}, v{128+i}")
        self.nop(2)
        for i in range(4):
            A(f"v_permlane32_swap_b32 v{128+i}, v{132+i}")
        self.nop(1)
        for i in range(4):
            A(f"v_mul_f32 v{136+i}, {f2u(-LOG2E):#x}, v{128+i}")
        for i in range(4):
            A(f"v_exp_f32 v{136+i}, v{136+i}")
        self.nop(1)
        for i in range(4):
            A(f"v_add_f32 v{136+i}, 1.0, v{136+i}")
        for i in range(4):
            A(f"v_rcp_f32 v{136+i}, v{136+i}")
        self.nop(1)
        for i in range(4):
            A(f"v_mul_f32 v{128+i}, v{128+i}, v{136+i}")
        for i in range(4):
            self.round_bf16(128 + i)
        for i in range(4):
            A(f"v_mul_f32 v{128+i}, v{128+i}, v{132+i}")
        A("v_cvt_pk_bf16_f32 v128, v128, v129")
        A("v_cvt_pk_bf16_f32 v129, v130, v131")
        for u in range(4):
            m16 = 0xf << (4 * u)
            A(f"s_mov_b32 s64, {m16 | (m16 << 16):#x}")
            A("s_mov_b32 s65, 0")
            A(f"v_cndmask_b32_e64 v{132+2*u}, 0, v128, s[64:65]")
            A(f"v_cndmask_b32_e64 v{133+2*u}, 0, v129, s[64:65]")
        self.nop(2)
        DB = 200
        for u in range(4):
            for t in range(7):
                c = "0" if u == 0 else f"v[{DB+4*t}:{DB+4*t+3}]"
                tl = 7 * u + t
                A(f"v_mfma_f32_16x16x16_bf16 v[{DB+4*t}:{DB+4*t+3}], v[{132+2*u}:{133+2*u}], v[{144+2*tl}:{145+2*tl}], {c}")
        A("v_lshlrev_b32 v8, 13, v0")
        A("s_lshl_b32 s68, s77, 4")
        A(f"s_add_u32 s68, s68, {W_BP:#x}")
        A("v_add_u32 v8, s68, v8")
        self.nop(8)
        for b in range(2):
            o = 232 + 8 * b
            for t in range(7):
                A(f"v_mov_b32 v{o+t}, v{DB+4*t+b}")
            A(f"v_bitop3_b32 v{o+7}, v{o}, v{o+1}, s58 bitop3:0x96")
            A(f"v_bitop3_b32 v{o+7}, v{o+7}, v{o+2}, v{o+3} bitop3:0x96")
            A(f"v_bitop3_b32 v{o+7}, v{o+7}, v{o+4}, v{o+5} bitop3:0x96")
            A(f"v_xor_b32 v{o+7}, v{o+7}, v{o+6}")
            A(f"s_mov_b32 s68, {b*64*8192:#x}")
            A(f"s_mov_b32 s69, {b*64*8192+4096:#x}")
            A(f"buffer_store_dwordx4 v[{o}:{o+3}], v8, s[36:39], s68 offen sc1")
            A(f"buffer_store_dwordx4 v[{o+4}:{o+7}], v8, s[36:39], s69 offen sc1")
        self.lab("L_noffn")
        self.srd(44, "s22", "s23", 896)
        A("buffer_load_dwordx4 v[128:131], v2, s[44:47], 0 offen")
        A("s_mul_i32 s68, s56, 896")
        A(f"s_add_u32 s68, s68, {L_X:#x}")
        A("v_add_u32 v8, s68, v2")
        A("ds_read_b128 v[132:135], v8")
        A("s_waitcnt vmcnt(0) lgkmcnt(0)")
        for d in range(4):
            A(f"v_lshlrev_b32 v136, 16, v{128+d}")
            A(f"v_and_b32 v137, s62, v{128+d}")
            A(f"v_lshlrev_b32 v138, 16, v{132+d}")
            A(f"v_and_b32 v139, s62, v{132+d}")
            A("v_mul_f32 v136, v136, v138")
            A("v_mul_f32 v137, v137, v139")
            A("v_cvt_pk_bf16_f32 v137, v136, v137")
            A("v_lshlrev_b32 v136, 16, v137")
            A("v_and_b32 v137, s62, v137")
            if d == 0:
                A("v_add_f32 v140, v136, v137")
            else:
                A("v_add_f32 v140, v140, v136")
                A("v_add_f32 v140, v140, v137")
        A("s_mov_b32 s64, -1")
        A("s_mov_b32 s65, 0x00ffffff")
        A("v_cndmask_b32_e64 v140, 0, v140, s[64:65]")
        self.row_allreduce("v_add_f32", [140])
        self.swap_allreduce("v_add_f32", [140], [141], 16)
        self.swap_allreduce("v_add_f32", [140], [141], 32)
        self.round_bf16(140)
        A(f"v_mul_f32 v140, {f2u(-LOG2E):#x}, v140")
        A("v_exp_f32 v140, v140")
        self.nop(1)
        A("v_add_f32 v140, 1.0, v140")
        A("v_rcp_f32 v14, v140")
        self.nop(1)
        self.round_bf16(14)
        A("v_sub_f32 v15, 1.0, v14")
        self.round_bf16(15)
        self.stamp(4)
        A("s_waitcnt vmcnt(0)")
        if "b2" not in p["abl"]:
            A("s_barrier")
        A("v_lshlrev_b32 v8, 3, v7")
        A(f"v_add_u32 v8, {L_ST:#x}, v8")
        for w in range(4):
            A(f"ds_read_b64 v[{128+2*w}:{129+2*w}], v8 offset:{w*16}")
        A("s_lshl_b32 s68, s54, 9")
        A(f"s_add_u32 s68, s68, {W_ST:#x}")
        A("s_lshl_b32 s69, s55, 5")
        A("s_add_u32 s69, s69, s68")
        A("v_lshlrev_b32 v9, 4, v7")
        A("v_add_u32 v9, s69, v9")
        A("v_and_b32 v10, 31, v0")
        A("v_lshlrev_b32 v10, 4, v10")
        A("v_add_u32 v10, s68, v10")
        A("s_waitcnt lgkmcnt(0)")
        A("v_max3_f32 v136, v128, v130, v132")
        A("v_max_f32 v136, v136, v134")
        for w in range(4):
            A(f"v_sub_f32 v{140+w}, v{128+2*w}, v136")
        for w in range(4):
            A(f"v_exp_f32 v{140+w}, v{140+w}")
        self.nop(1)
        A("v_mul_f32 v137, v140, v129")
        for w in range(1, 4):
            A(f"v_fmac_f32 v137, v{140+w}, v{129+2*w}")
        A("v_bitop3_b32 v138, v136, v137, s58 bitop3:0x96")
        A("v_mov_b32 v139, v138")
        A("s_mov_b64 exec, 3")
        A("buffer_store_dwordx4 v[136:139], v9, s[36:39], 0 offen sc1")
        A("s_mov_b64 exec, -1")
        self.poll(["buffer_load_dwordx4 v[144:147], v10, s[36:39], 0 offen sc1"], [[144, 145, 146]], 148, sleep=8)
        A("v_mov_b32 v148, v144")
        self.row_allreduce("v_max_f32", [148], steps=(8, 4, 2))
        self.swap_allreduce("v_max_f32", [148], [149], 16)
        A("v_sub_f32 v144, v144, v148")
        A("v_exp_f32 v144, v144")
        self.nop(1)
        A("v_mul_f32 v145, v145, v144")
        self.row_allreduce("v_add_f32", [145], steps=(8, 4, 2))
        self.swap_allreduce("v_add_f32", [145], [149], 16)
        A("v_rcp_f32 v145, v145")
        for w in range(4):
            A(f"v_sub_f32 v{140+w}, v{128+2*w}, v148")
        for w in range(4):
            A(f"v_exp_f32 v{140+w}, v{140+w}")
        self.nop(1)
        for w in range(4):
            A(f"v_mul_f32 v{140+w}, v{140+w}, v145")
        A("v_lshlrev_b32 v8, 4, v7")
        A(f"v_add_u32 v8, {L_F:#x}, v8")
        A("s_mov_b64 exec, 3")
        A("ds_write_b128 v8, v[140:143]")
        A("s_mov_b64 exec, -1")
        A("s_cmp_ge_u32 s67, 64")
        A("s_cbranch_scc1 L_notcons")
        A("s_lshl_b32 s68, s56, 6")
        A("s_add_u32 s68, s68, s67")
        A("s_lshl_b32 s69, s68, 13")
        A(f"s_add_u32 s69, s69, {W_BP:#x}")
        A("v_add_u32 v8, s69, v2")
        A("s_mov_b32 s78, 4096")
        A("s_mov_b32 s64, -1")
        A("s_mov_b32 s65, 0")
        loads = []
        groups = []
        for q in range(4):
            o = 128 + 8 * q
            loads.append(f"buffer_load_dwordx4 v[{o}:{o+3}], v8, s[36:39], 0 offen offset:{q*1024} sc1")
            loads.append(f"buffer_load_dwordx4 v[{o+4}:{o+7}], v8, s[36:39], s78 offen offset:{q*1024} sc1")
            regs = list(range(o, o + 8))
            groups.append((regs, "s[64:65]") if q == 3 else regs)
        self.poll(loads, groups, 160, sleep=8)
        for t in range(7):
            A(f"v_cndmask_b32_e64 v{152+t}, 0, v{152+t}, s[64:65]")
        for t in range(7):
            A(f"v_add_f32 v{128+t}, v{128+t}, v{136+t}")
            A(f"v_add_f32 v{144+t}, v{144+t}, v{152+t}")
        for t in range(7):
            A(f"v_add_f32 v{128+t}, v{128+t}, v{144+t}")
        self.reduce7(list(range(128, 135)), 135)
        self.round_bf16(128)
        A("v_mul_f32 v15, v15, v128")
        self.round_bf16(15)
        A("s_lshl_b32 s69, s68, 12")
        A(f"s_add_u32 s69, s69, {W_H2:#x}")
        A("v_add_u32 v8, s69, v2")
        self.srd(48, "s24", "s25", 1792)
        A("s_lshr_b32 s69, s67, 4")
        A("s_mul_i32 s69, s69, 112")
        A("s_and_b32 s71, s67, 15")
        A("s_add_u32 s69, s69, s71")
        A("s_lshl_b32 s69, s69, 1")
        A("s_mul_i32 s71, s56, 896")
        A("s_add_u32 s69, s69, s71")
        A("v_lshrrev_b32 v9, 3, v0")
        A("v_lshlrev_b32 v9, 5, v9")
        A("v_add_u32 v9, s69, v9")
        self.stamp(5)
        A("s_waitcnt lgkmcnt(0)")
        A("s_barrier")
        loads = []
        for q in range(2):
            o = 128 + 8 * q
            loads.append(f"buffer_load_dwordx4 v[{o}:{o+3}], v8, s[36:39], 0 offen offset:{q*1024} sc1")
            loads.append(f"buffer_load_dwordx4 v[{o+4}:{o+7}], v8, s[36:39], 0 offen offset:{2048+q*1024} sc1")
        self.poll(loads, [list(range(128, 136)), list(range(136, 144))], 160)
        self.stamp(6)
        for t in range(7):
            A(f"v_add_f32 v{128+t}, v{128+t}, v{136+t}")
        self.reduce7(list(range(128, 135)), 135)
        self.round_bf16(128)
        A("v_mul_f32 v128, v14, v128")
        self.round_bf16(128)
        A("v_add_f32 v128, v128, v15")
        A("v_cvt_pk_bf16_f32 v128, v128, v128")
        A("s_mov_b32 s64, 0x01010101")
        A("s_mov_b32 s65, 0x00010101")
        A("s_mov_b64 exec, s[64:65]")
        A("buffer_store_short v128, v9, s[48:51], 0 offen")
        A("s_cmp_lg_u32 s68, 0")
        A("s_cbranch_scc1 L_hend")
        A("s_mov_b64 exec, 1")
        A("v_mov_b32 v130, s76")
        A("v_mov_b32 v131, 0")
        A("buffer_store_dword v130, v131, s[36:39], 0 offen sc1")
        A("s_branch L_hend")
        self.lab("L_notcons")
        A("s_waitcnt lgkmcnt(0)")
        A("s_barrier")
        self.lab("L_hend")
        self.write_stamps()


if __name__ == "__main__":
    import json
    out = sys.argv[1]
    kw = json.loads(sys.argv[2]) if len(sys.argv) > 2 else {}
    open(out, "w").write(G(**kw).gen())
```

```python
import sys, math, struct

KNAME = "gated_mix__gqa_block_cached__glu_gated_swiglu__decode_kernel"

HEADER = """; Kernarg layout for this problem (104 bytes, ptrs only, base s[0:1]):
"""

L_SC = 0x0000
L_Q = 0x4000
L_TAG = 0x4400
L_F = 0x4420
L_ST = 0x4480
L_X = 0x4800
L_PART = 0x5000
L_WQ = 0x7000
L_W1 = 0xA800
L_W3 = 0xC400
L_W2 = 0xE000
L_WO = 0x10000
LDS_BYTES = 0x17000

W_EPOCH = 0
W_Q = 0x1000
W_ST = 0x10000
W_H1 = 0x100000
W_H2 = 0x200000
W_BP = 0x300000
WS_USED = 0x400000

def f2u(f):
    return struct.unpack("<I", struct.pack("<f", f))[0]

LOG2E = 1.4426950408889634

class G:
    def __init__(self, **p):
        self.L = []
        self.p = dict(pace=10, stamps=False, round_scores=True, spin=0x40000, kflags="nt", vflags="nt",
                      mapping="x128", b0=True, wflags="", qflags="", abl="", cpref=True, fflags=None, dbgtime=False, hst=False, fpace=1, wo_late=True, caps=(6,), vcaps=None, tst=False)
        self.p.update(p)
        self.nlab = 0
        self.nstamp = 0

    def A(self, s):
        self.L.append("    " + s)

    def lab(self, name):
        self.L.append(name + ":")

    def newlab(self, base):
        self.nlab += 1
        return f"L_{base}{self.nlab}"

    def nop(self, n):
        if n > 0:
            self.A(f"s_nop {n-1}")

    def hstamp(self, k):
        if self.p["hst"]:
            self.A(f"s_memrealtime s[{80+2*k}:{81+2*k}]")

    def stamp(self, k):
        if (self.p["hst"] or self.p["tst"]) and k not in (0, 7):
            return
        if self.p["stamps"] or self.p["dbgtime"]:
            self.A(f"s_memrealtime s[{80+2*k}:{81+2*k}]")

    def write_stamps(self):
        A = self.A
        if self.p["dbgtime"]:
            self.stamp(7)
            A("s_mov_b64 exec, 1")
            A("s_waitcnt vmcnt(0) lgkmcnt(0)")
            A("s_not_b32 s80, s80")
            A("s_cmp_eq_u32 s3, 4")
            A("s_cselect_b32 s68, 32, 0")
            A("v_mov_b32 v12, s68")
            for k in range(8):
                A(f"v_mov_b32 v13, s{80+2*k}")
                A(f"global_atomic_umax v12, v13, s[26:27] offset:{4*k}")
            return
        if not self.p["stamps"]:
            return
        self.stamp(7)
        A("s_mov_b64 exec, -1")
        A("s_mul_i32 s68, s2, 5")
        A("s_add_u32 s68, s68, s3")
        A("s_lshl_b32 s69, s68, 4")
        A("s_add_u32 s69, s69, 0x20000000")
        A("s_lshl_b32 s68, s68, 7")
        A("s_add_u32 s68, s68, 0x21000000")
        A("s_waitcnt vmcnt(0) lgkmcnt(0)")
        A("v_mov_b32 v12, s69")
        A("v_mov_b32 v13, s68")
        for i in range(16):
            A(f"v_mov_b32 v{16+i}, s{80+i}")
        A("v_mov_b32 v32, s80"); A("v_mov_b32 v33, s81"); A("v_mov_b32 v34, s94"); A("v_mov_b32 v35, s95")
        A("s_mov_b64 exec, 1")
        A("global_store_dwordx4 v12, v[32:35], s[28:29]")
        for i in range(4):
            A(f"global_store_dwordx4 v13, v[{16+4*i}:{19+4*i}], s[28:29] offset:{16*i}")
        A("s_waitcnt vmcnt(0)")

    def row_allreduce(self, op, regs, steps=(8, 4, 2, 1)):
        A = self.A
        self.nop(2)
        for st in steps:
            for r in regs:
                A(f"{op}_dpp v{r}, v{r}, v{r} row_ror:{st} row_mask:0xf bank_mask:0xf")
            if len(regs) < 3:
                self.nop(3 - len(regs))

    def swap_allreduce(self, op, regs, tmps, which):
        A = self.A
        for r, t in zip(regs, tmps):
            A(f"v_mov_b32 v{t}, v{r}")
        self.nop(2)
        for r, t in zip(regs, tmps):
            A(f"v_permlane{which}_swap_b32 v{r}, v{t}")
        self.nop(1)
        for r, t in zip(regs, tmps):
            A(f"{op} v{r}, v{r}, v{t}")

    def round_bf16(self, r, t=None):
        A = self.A
        A(f"v_cvt_pk_bf16_f32 v{r}, v{r}, v{r}")
        A(f"v_and_b32 v{r}, s62, v{r}")

    def reduce7(self, v, z):
        A = self.A
        A(f"v_mov_b32 v{z}, 0")
        w = list(v) + [z]
        self.nop(2)
        for i in range(4):
            A(f"v_permlane32_swap_b32 v{w[i]}, v{w[i+4]}")
        self.nop(1)
        for i in range(4):
            A(f"v_add_f32 v{w[i]}, v{w[i]}, v{w[i+4]}")
        self.nop(2)
        for i in range(2):
            A(f"v_permlane16_swap_b32 v{w[i]}, v{w[i+2]}")
        self.nop(1)
        for i in range(2):
            A(f"v_add_f32 v{w[i]}, v{w[i]}, v{w[i+2]}")
        self.nop(2)
        A(f"v_add_f32_dpp v{w[0]}, v{w[0]}, v{w[0]} row_ror:8 row_mask:0xf bank_mask:0x3")
        A(f"v_add_f32_dpp v{w[0]}, v{w[1]}, v{w[1]} row_ror:8 row_mask:0xf bank_mask:0xc")
        self.nop(2)
        A(f"v_add_f32_dpp v{w[0]}, v{w[0]}, v{w[0]} row_half_mirror row_mask:0xf bank_mask:0xf")
        self.nop(2)
        A(f"v_add_f32_dpp v{w[0]}, v{w[0]}, v{w[0]} quad_perm:[1,0,3,2] row_mask:0xf bank_mask:0xf")
        self.nop(2)
        A(f"v_add_f32_dpp v{w[0]}, v{w[0]}, v{w[0]} quad_perm:[2,3,0,1] row_mask:0xf bank_mask:0xf")

    def srd(self, d, lo, hi, nbytes):
        A = self.A
        A(f"s_mov_b32 s{d}, {lo}")
        A(f"s_mov_b32 s{d+1}, {hi}")
        A(f"s_mov_b32 s{d+2}, {nbytes:#x}")
        A(f"s_mov_b32 s{d+3}, 0x00020000")

    def poll(self, loads, groups, tmp, sleep=0):
        A = self.A
        lp = self.newlab("poll")
        done = self.newlab("pdone")
        A(f"s_mov_b32 s70, {self.p['spin']:#x}")
        self.lab(lp)
        for l in loads:
            A(l)
        A("s_waitcnt vmcnt(0)")
        first = True
        for gi, g in enumerate(groups):
            mask = None
            if isinstance(g, tuple):
                g, mask = g
            regs = list(g)
            t = tmp + gi
            if len(regs) == 3:
                A(f"v_bitop3_b32 v{t}, v{regs[0]}, v{regs[1]}, v{regs[2]} bitop3:0x96")
            else:
                A(f"v_bitop3_b32 v{t}, v{regs[0]}, v{regs[1]}, v{regs[2]} bitop3:0x96")
                rest = regs[3:]
                while len(rest) >= 2:
                    A(f"v_bitop3_b32 v{t}, v{t}, v{rest[0]}, v{rest[1]} bitop3:0x96")
                    rest = rest[2:]
                if rest:
                    A(f"v_xor_b32 v{t}, v{t}, v{rest[0]}")
            dst = "s[72:73]" if first else "s[74:75]"
            A(f"v_cmp_ne_u32_e64 {dst}, s58, v{t}")
            if mask is not None:
                A(f"s_and_b64 {dst}, {dst}, {mask}")
            if not first:
                A("s_or_b64 s[72:73], s[72:73], s[74:75]")
            first = False
        A("s_cmp_eq_u64 s[72:73], 0")
        A(f"s_cbranch_scc1 {done}")
        if sleep:
            A(f"s_sleep {sleep}")
        A("s_sub_u32 s70, s70, 1")
        A("s_cmp_lg_u32 s70, 0")
        A(f"s_cbranch_scc1 {lp}")
        self.lab(done)

    def gen(self):
        A = self.A
        p = self.p
        L = self.L
        L.append(HEADER + f"; @launch grid=(256,1,1) block=(320,1,1) lds={LDS_BYTES}")
        L.append('.amdgcn_target "amdgcn-amd-amdhsa--gfx950"')
        L.append(".text")
        L.append(f".globl {KNAME}")
        L.append(".p2align 8")
        L.append(f".type {KNAME},@function")
        self.lab(KNAME)
        A("s_cmp_ge_u32 s2, 256")
        A("s_cbranch_scc1 L_end")
        A("s_load_dwordx16 s[4:19], s[0:1], 0")
        A("s_load_dwordx8 s[20:27], s[0:1], 64")
        A("s_load_dwordx2 s[28:29], s[0:1], 96")
        if p["dbgtime"]:
            for k in range(1, 8):
                A(f"s_mov_b32 s{80+2*k}, 0")
        self.stamp(0)
        A("v_lshrrev_b32 v1, 6, v0")
        A("v_and_b32 v0, 63, v0")
        A("v_readfirstlane_b32 s3, v1")
        if p["mapping"] == "x128":
            A("s_and_b32 s52, s2, 127")
            A("s_lshr_b32 s53, s2, 7")
        elif p["mapping"] == "x128b":
            A("s_and_b32 s52, s2, 7")
            A("s_lshl_b32 s52, s52, 4")
            A("s_bfe_u32 s53, s2, 0x40003")
            A("s_add_u32 s52, s52, s53")
            A("s_lshr_b32 s53, s2, 7")
        A("s_lshr_b32 s54, s52, 3")
        A("s_and_b32 s55, s52, 7")
        A("s_lshl_b32 s55, s55, 1")
        A("s_add_u32 s55, s55, s53")
        A("s_lshr_b32 s56, s54, 3")
        A("s_and_b32 s57, s54, 7")
        A("s_mov_b32 s62, 0xffff0000")
        A("s_cmp_lg_u32 s3, 4")
        A("s_cbranch_scc1 L_stream")
        self.helper()
        A("s_endpgm")
        self.lab("L_stream")
        self.stream()
        self.lab("L_end")
        A("s_endpgm")
        L.append('.section .rodata,"a"')
        L.append(".p2align 6")
        L.append(f".amdhsa_kernel {KNAME}")
        L.append("  .amdhsa_next_free_vgpr 256")
        L.append("  .amdhsa_next_free_sgpr 102")
        L.append("  .amdhsa_accum_offset 256")
        L.append("  .amdhsa_group_segment_fixed_size 0")
        L.append("  .amdhsa_kernarg_size 104")
        L.append("  .amdhsa_user_sgpr_count 2")
        L.append("  .amdhsa_user_sgpr_kernarg_segment_ptr 1")
        L.append("  .amdhsa_system_sgpr_workgroup_id_x 1")
        L.append("  .amdhsa_float_denorm_mode_32 3")
        L.append(".end_amdhsa_kernel")
        return "\n".join(L) + "\n"

    def ring(self, rp, s, j):
        return 128 + ((rp * 2 + s) * 4 + j) * 4

    def ldk(self, rp, s, j):
        r = self.ring(rp, s, j)
        sb = "s61" if s else "s60"
        self.A(f"buffer_load_dwordx4 v[{r}:{r+3}], v1, s[32:35], {sb} offen offset:{j*128} {self.p['kflags']}")

    def vring(self, rp, s, j):
        return 64 + ((rp * 2 + s) * 4 + j) * 4

    def ldv(self, rp, s, j, s0="s60", s1="s61"):
        r = self.vring(rp, s, j)
        sb = s1 if s else s0
        self.A(f"buffer_load_dwordx4 v[{r}:{r+3}], v2, s[40:43], {sb} offen offset:{j*1024} {self.p['vflags']}")

    def tstamp(self, k):
        if self.p["tst"]:
            self.A(f"s_memrealtime s[{80+2*k}:{81+2*k}]")

    def stream(self):
        A = self.A
        p = self.p
        caps = list(p["caps"])
        vcaps = list(p["vcaps"] or caps)
        cmax = max(caps)
        A("v_and_b32 v12, 15, v0")
        A("v_lshrrev_b32 v13, 4, v0")
        A("v_lshrrev_b32 v14, 1, v12")
        A("v_lshlrev_b32 v1, 9, v14")
        A("v_and_b32 v15, 1, v12")
        A("v_lshl_or_b32 v1, v15, 6, v1")
        A("v_lshl_or_b32 v1, v13, 4, v1")
        A("s_lshl_b32 s66, s53, 2")
        A("s_add_u32 s66, s66, s3")
        A("s_lshl_b32 s66, s66, 13")
        A("s_lshl_b32 s67, s52, 21")
        A("s_mov_b32 s60, s66")
        A("s_mov_b32 s34, 0x200000")
        A("s_mov_b32 s35, 0x00020000")
        A("s_waitcnt lgkmcnt(0)")
        A("s_add_u32 s32, s6, s67")
        A("s_addc_u32 s33, s7, 0")
        self.hstamp(1)
        if p["b0"]:
            A("s_barrier")
        self.hstamp(2)
        n = 0
        for rp in range(4):
            A("s_add_u32 s61, s60, 4096")
            for s in range(2):
                for j in range(4):
                    if n == cmax:
                        self.hstamp(3)
                    if n >= cmax:
                        A(f"s_waitcnt vmcnt({caps[n % len(caps)]-1})")
                    if n == cmax:
                        self.hstamp(4)
                    if n == cmax + 9:
                        self.hstamp(5)
                    self.ldk(rp, s, j)
                    n += 1
                    if n == cmax:
                        self.stream_setup()
            A("s_add_u32 s60, s60, 0x10000")
        self.stamp(1)
        self.hstamp(6)
        A("s_barrier")
        for j in range(4):
            A(f"ds_read_b128 v[{16+4*j}:{19+4*j}], v12 offset:{j*128}")
        A(f"ds_read_b32 v13, v13")
        A("s_mov_b32 s59, 0")
        A("s_waitcnt lgkmcnt(0)")
        A("v_readfirstlane_b32 s58, v13")
        self.stamp(2)
        def kset(rp, s, mid):
            d = 32 + 4 * s
            for j in range(4):
                r = self.ring(rp, s, j)
                c = "0" if j == 0 else f"v[{d}:{d+3}]"
                A(f"v_mfma_f32_16x16x32_bf16 v[{d}:{d+3}], v[{16+4*j}:{19+4*j}], v[{r}:{r+3}], {c}")
            k = mid()
            self.nop(max(0, 8 - k))
            t = 40 + 2 * s
            A(f"v_add_f32_dpp v{t}, v{d+1}, v{d} quad_perm:[1,1,3,3] row_mask:0xf bank_mask:0xf")
            A(f"v_add_f32_dpp v{t+1}, v{d+3}, v{d+2} quad_perm:[1,1,3,3] row_mask:0xf bank_mask:0xf")
            if s == 1:
                A("s_mov_b64 exec, 0x5555")
                A(f"ds_write_b128 v4, v[40:43] offset:{rp*128}")
                A("s_mov_b64 exec, -1")
        self.lab("L_kloop")
        n = 0
        for rp in range(4):
            A("s_add_u32 s61, s60, 4096")
            for s in range(2):
                def mid():
                    nonlocal n
                    for j in range(4):
                        A(f"s_waitcnt vmcnt({caps[n % len(caps)]-1})")
                        self.ldk(rp, s, j)
                        n += 1
                    return 8
                kset(rp, s, mid)
            A("s_add_u32 s60, s60, 0x10000")
        A("v_add_u32 v4, 512, v4")
        A("s_add_u32 s59, s59, 1")
        A("s_cmp_lt_u32 s59, 7")
        A("s_cbranch_scc1 L_kloop")
        A("s_mov_b32 s60, s66")
        A("s_add_u32 s61, s60, 4096")
        A("s_add_u32 s68, s60, 0x10000")
        A("s_add_u32 s69, s60, 0x11000")
        vseq = [(rp, s, j) for rp in range(2) for s in range(2) for j in range(4)]
        nv = 0
        def vissue(paced):
            nonlocal nv
            rp, s, j = vseq[nv]
            if paced:
                A(f"s_waitcnt vmcnt({cmax-1})")
            if rp == 0:
                self.ldv(rp, s, j)
            else:
                self.ldv(rp, s, j, "s68", "s69")
            nv += 1
        assert cmax <= 8
        for rp in range(4):
            for s in range(2):
                idx = rp * 2 + s
                def mid():
                    if idx < 5:
                        vissue(True)
                        return 2
                    if idx == 5:
                        while nv < cmax:
                            vissue(True)
                        A(f"s_waitcnt vmcnt({nv})")
                        while nv < 16:
                            vissue(False)
                        return 8
                    return 0
                kset(rp, s, mid)
        A("s_add_u32 s60, s60, 0x20000")
        self.stamp(3)
        S = 128
        A("s_waitcnt lgkmcnt(0)")
        for i in range(4):
            A(f"ds_read_b128 v[{S+4*i}:{S+4*i+3}], v14 offset:{i*1024}")
        A(f"s_mov_b32 s63, {f2u(LOG2E/16):#x}")
        A("s_waitcnt lgkmcnt(0)")
        if p["round_scores"]:
            for i in range(8):
                a, b = S + 2 * i, S + 2 * i + 1
                A(f"v_cvt_pk_bf16_f32 v{b}, v{a}, v{b}")
                A(f"v_lshlrev_b32 v{a}, 16, v{b}")
                A(f"v_and_b32 v{b}, s62, v{b}")
        m = [148, 150]
        T2 = [152, 153]
        for h in range(2):
            A(f"v_max3_f32 v{m[h]}, v{S+h}, v{S+2+h}, v{S+4+h}")
            A(f"v_max3_f32 v{m[h]}, v{m[h]}, v{S+6+h}, v{S+8+h}")
            A(f"v_max3_f32 v{m[h]}, v{m[h]}, v{S+10+h}, v{S+12+h}")
            A(f"v_max_f32 v{m[h]}, v{m[h]}, v{S+14+h}")
        self.row_allreduce("v_max_f32", m)
        self.swap_allreduce("v_max_f32", m, T2, 16)
        self.swap_allreduce("v_max_f32", m, T2, 32)
        for h in range(2):
            A(f"v_mul_f32 v{m[h]}, s63, v{m[h]}")
        for i in range(16):
            A(f"v_fma_f32 v{S+i}, v{S+i}, s63, -v{m[i&1]}")
        for i in range(16):
            A(f"v_exp_f32 v{S+i}, v{S+i}")
        l = [149, 151]
        self.nop(1)
        for i in range(4):
            A(f"ds_write_b128 v14, v[{S+4*i}:{S+4*i+3}] offset:{i*1024}")
        for h in range(2):
            A(f"v_add_f32 v{l[h]}, v{S+h}, v{S+2+h}")
            for i in range(2, 8):
                A(f"v_add_f32 v{l[h]}, v{l[h]}, v{S+2*i+h}")
        A("s_waitcnt lgkmcnt(0)")
        PB = 160
        for j in range(4):
            A(f"ds_read_b128 v[{PB+4*j}:{PB+4*j+3}], v5 offset:{j*32}")
        self.row_allreduce("v_add_f32", l)
        self.swap_allreduce("v_add_f32", l, T2, 16)
        self.swap_allreduce("v_add_f32", l, T2, 32)
        A("s_mov_b64 exec, 1")
        A("ds_write_b128 v15, v[148:151]")
        A("s_mov_b64 exec, -1")
        AC = 16
        for i in range(16):
            A(f"v_mov_b32 v{AC+i}, 0")
        A("s_mov_b32 s59, 0")
        A("s_waitcnt lgkmcnt(0)")
        if "b2" not in p["abl"]:
            A("s_barrier")
        A("s_waitcnt vmcnt(15)")
        self.stamp(4)
        def vbody(last):
            n = 0
            for rp in range(2):
                P = PB + 16 * rp
                Pn = PB + 16 * (1 - rp)
                if not last:
                    A("s_add_u32 s61, s60, 4096")
                A("s_waitcnt lgkmcnt(0)")
                if not (last and rp == 1):
                    for j in range(4):
                        A(f"ds_read_b128 v[{Pn+4*j}:{Pn+4*j+3}], v5 offset:{(rp+1)*128 + j*32}")
                for s in range(2):
                    for j in range(4):
                        r = self.vring(rp, s, j)
                        if last and 15 - n < max(vcaps):
                            A(f"s_waitcnt vmcnt({15 - n})")
                        for d in range(4):
                            A(f"v_lshlrev_b32 v{52+2*d}, 16, v{r+d}")
                            A(f"v_and_b32 v{53+2*d}, s62, v{r+d}")
                        pp = P + 4 * j + 2 * s
                        for h in range(2):
                            for d in range(4):
                                a = AC + h * 8 + 2 * d
                                A(f"v_pk_fma_f32 v[{a}:{a+1}], v[{52+2*d}:{53+2*d}], v[{pp}:{pp+1}], v[{a}:{a+1}] op_sel:[0,{h},0] op_sel_hi:[1,{h},1]")
                        if not last:
                            A(f"s_waitcnt vmcnt({vcaps[n % len(vcaps)]-1})")
                            self.ldv(rp, s, j)
                        n += 1
                if not last:
                    A("s_add_u32 s60, s60, 0x10000")
        self.lab("L_vloop")
        vbody(False)
        A("v_add_u32 v5, 256, v5")
        A("s_add_u32 s59, s59, 1")
        A("s_cmp_lt_u32 s59, 15")
        A("s_cbranch_scc1 L_vloop")
        vbody(True)
        self.stamp(5)
        self.tstamp(1)
        self.nop(2)
        for e in range(8):
            A(f"v_permlane32_swap_b32 v{AC+e}, v{AC+8+e}")
        for e in range(8):
            A(f"v_add_f32 v{AC+e}, v{AC+e}, v{AC+8+e}")
        A(f"ds_write_b128 v9, v[{AC}:{AC+3}]")
        A(f"ds_write_b128 v9, v[{AC+4}:{AC+7}] offset:16")
        A("s_waitcnt lgkmcnt(0)")
        self.tstamp(2)
        A("s_barrier")
        self.tstamp(3)
        for w in range(4):
            A(f"ds_read_b64 v[{80+2*w}:{81+2*w}], v10 offset:{w*2048}")
        A("ds_read_b128 v[88:91], v60")
        def wot(t):
            A(f"ds_read_b64_tr_b16 v[{128+4*t}:{129+4*t}], v11 offset:{t*32}")
            A(f"ds_read_b64_tr_b16 v[{130+4*t}:{131+4*t}], v11 offset:{t*32+4*896}")
        A("s_waitcnt lgkmcnt(0)")
        A("v_pk_mul_f32 v[92:93], v[80:81], v[88:89] op_sel:[0,0] op_sel_hi:[1,0]")
        A("v_pk_fma_f32 v[92:93], v[82:83], v[88:89], v[92:93] op_sel:[0,1,0] op_sel_hi:[1,1,1]")
        A("v_pk_fma_f32 v[92:93], v[84:85], v[90:91], v[92:93] op_sel:[0,0,0] op_sel_hi:[1,0,1]")
        A("v_pk_fma_f32 v[92:93], v[86:87], v[90:91], v[92:93] op_sel:[0,1,0] op_sel_hi:[1,1,1]")
        A("v_bitop3_b32 v94, v92, v93, s58 bitop3:0x96")
        A("v_mov_b32 v95, v94")
        A("buffer_store_dwordx4 v[92:95], v6, s[36:39], 0 offen sc1")
        self.tstamp(4)
        for t in range(7):
            wot(t)
        X = 96
        loads = [f"buffer_load_dwordx4 v[{X+4*i}:{X+4*i+3}], v7, s[36:39], 0 offen offset:{i*1024} sc1" for i in range(4)]
        self.poll(loads, [[X + 4 * i, X + 4 * i + 1, X + 4 * i + 2] for i in range(4)], 112)
        self.stamp(6)
        self.tstamp(5)
        vals = [X + 4 * i + k for i in range(4) for k in range(2)]
        self.row_allreduce("v_add_f32", vals)
        for i in range(4):
            A(f"v_cvt_pk_bf16_f32 v{116+i}, v{X+4*i}, v{X+4*i+1}")
        A("s_waitcnt lgkmcnt(0)")
        self.nop(1)
        for t in range(7):
            A(f"v_mfma_f32_16x16x32_bf16 v[{160+4*t}:{163+4*t}], v[116:119], v[{128+4*t}:{131+4*t}], 0")
        D = [160 + 4 * t for t in range(7)]
        self.nop(8)
        A(f"v_bitop3_b32 v123, v{D[0]}, v{D[1]}, s58 bitop3:0x96")
        A(f"v_bitop3_b32 v123, v123, v{D[2]}, v{D[3]} bitop3:0x96")
        A(f"v_bitop3_b32 v123, v123, v{D[4]}, v{D[5]} bitop3:0x96")
        A(f"v_xor_b32 v123, v123, v{D[6]}")
        for i in range(3):
            A(f"v_cndmask_b32_e64 v{120+i}, v{D[i]}, v{D[4+i]}, s[64:65]")
        A(f"v_cndmask_b32_e64 v123, v{D[3]}, v123, s[64:65]")
        A("s_mov_b32 exec_hi, 0")
        A("buffer_store_dwordx4 v[120:123], v8, s[36:39], 0 offen sc1")
        self.tstamp(6)
        self.write_stamps()
        A("s_endpgm")

    def stream_setup(self):
        A = self.A
        self.srd(36, "s28", "s29", WS_USED)
        A("s_mov_b32 s64, 0xffff0000")
        A("s_mov_b32 s65, 0")
        A("s_lshl_b32 s68, s3, 12")
        A("v_lshlrev_b32 v4, 4, v14")
        A("v_add_u32 v4, s68, v4")
        A("v_lshlrev_b32 v2, 4, v0")
        A("v_lshrrev_b32 v61, 5, v0")
        A("v_lshlrev_b32 v5, 4, v61")
        A("v_add_u32 v5, s68, v5")
        A("s_add_u32 s40, s8, s67")
        A("s_addc_u32 s41, s9, 0")
        A("s_mov_b32 s42, 0x200000")
        A("s_mov_b32 s43, 0x00020000")
        A("s_lshl_b32 s69, s3, 11")
        A(f"s_add_u32 s69, s69, {L_PART}")
        A("v_lshlrev_b32 v9, 5, v0")
        A("v_add_u32 v9, s69, v9")
        A("s_lshl_b32 s69, s3, 9")
        A(f"s_add_u32 s69, s69, {L_PART}")
        A("v_lshlrev_b32 v10, 3, v0")
        A("v_add_u32 v10, s69, v10")
        A("s_lshr_b32 s69, s3, 1")
        A("s_lshl_b32 s69, s69, 4")
        A(f"s_add_u32 s69, s69, {L_F}")
        A("v_mov_b32 v60, s69")
        A("s_lshl_b32 s69, s54, 4")
        A("s_lshl_b32 s71, s3, 2")
        A("s_add_u32 s69, s69, s71")
        A("s_lshl_b32 s69, s69, 12")
        A("s_lshl_b32 s71, s55, 6")
        A("s_add_u32 s69, s69, s71")
        A(f"s_add_u32 s69, s69, {W_H1:#x}")
        A("v_lshlrev_b32 v6, 12, v13")
        A("v_and_b32 v63, 3, v0")
        A("v_lshl_or_b32 v6, v63, 10, v6")
        A("v_bfe_u32 v63, v0, 2, 2")
        A("v_lshl_or_b32 v6, v63, 4, v6")
        A("v_add_u32 v6, s69, v6")
        A("s_lshl_b32 s69, s54, 4")
        A("s_add_u32 s69, s69, s55")
        A("s_lshl_b32 s69, s69, 12")
        A(f"s_add_u32 s69, s69, {W_H1:#x}")
        A("v_lshlrev_b32 v7, 6, v12")
        A("v_lshl_or_b32 v7, v13, 4, v7")
        A("v_add_u32 v7, s69, v7")
        A("s_lshl_b32 s69, s56, 6")
        A("s_lshl_b32 s71, s3, 4")
        A("s_add_u32 s69, s69, s71")
        A("s_lshl_b32 s69, s69, 12")
        A("s_lshl_b32 s71, s57, 4")
        A("s_add_u32 s71, s71, s55")
        A("s_lshl_b32 s71, s71, 4")
        A("s_add_u32 s69, s69, s71")
        A(f"s_add_u32 s69, s69, {W_H2:#x}")
        A("v_lshlrev_b32 v8, 12, v12")
        A("v_and_b32 v63, 1, v13")
        A("v_lshl_or_b32 v8, v63, 11, v8")
        A("v_add_u32 v8, s69, v8")
        A("v_lshrrev_b32 v63, 2, v12")
        A("v_lshl_add_u32 v63, v13, 3, v63")
        A("v_mul_u32_u24 v11, 896, v63")
        A("v_and_b32 v63, 3, v12")
        A("v_lshl_add_u32 v11, v63, 3, v11")
        A("s_mul_i32 s69, s3, 224")
        A(f"s_add_u32 s69, s69, {L_WO:#x}")
        A("v_add_u32 v11, s69, v11")
        A("v_and_b32 v63, 1, v14")
        A("v_lshlrev_b32 v12, 9, v63")
        A("v_lshl_or_b32 v12, v15, 6, v12")
        A("v_lshl_or_b32 v12, v13, 4, v12")
        A(f"v_add_u32 v12, {L_Q:#x}, v12")
        A(f"v_mov_b32 v13, {L_TAG:#x}")
        A("v_lshlrev_b32 v14, 4, v0")
        A("v_add_u32 v14, s68, v14")
        A("s_lshl_b32 s69, s3, 4")
        A(f"s_add_u32 s69, s69, {L_ST:#x}")
        A("v_mov_b32 v15, s69")

    def dma(self, vaddr, srd, soff, ldsaddr, fl=None):
        if fl is None:
            fl = self.p["wflags"]
            if "w" in self.p["abl"]:
                return
        A = self.A
        A(f"s_mov_b32 m0, {ldsaddr:#x}")
        if isinstance(soff, int):
            if soff == 0:
                so = "0"
                self.nop(1)
            else:
                A(f"s_mov_b32 s71, {soff:#x}")
                so = "s71"
        else:
            so = soff
            self.nop(1)
        A(f"buffer_load_dwordx4 v{vaddr}, s[{srd}:{srd+3}], {so} offen {fl} lds")

    def helper(self):
        A = self.A
        p = self.p
        A("s_setprio 3")
        A("v_and_b32 v12, 15, v0")
        A("v_lshrrev_b32 v13, 4, v0")
        A("s_and_b32 s66, s2, 7")
        A("s_lshr_b32 s67, s2, 5")
        A("s_lshl_b32 s67, s67, 3")
        A("s_or_b32 s66, s66, s67")
        A("s_lshl_b32 s66, s66, 2")
        A("s_bfe_u32 s67, s2, 0x20003")
        A("s_add_u32 s66, s66, s67")
        A("v_lshrrev_b32 v1, 1, v0")
        A("v_lshlrev_b32 v1, 13, v1")
        A("v_and_b32 v2, 1, v0")
        A("v_lshl_or_b32 v1, v2, 4, v1")
        A("s_lshl_b32 s67, s66, 5")
        A("v_add_u32 v1, s67, v1")
        A("v_lshlrev_b32 v2, 4, v0")
        A("s_waitcnt lgkmcnt(0)")
        self.hstamp(1)
        A("s_load_dword s58, s[28:29], 0")
        self.srd(40, "s10", "s11", 448 * 8192)
        self.srd(44, "s4", "s5", 1792)
        for i in range(14):
            self.dma(1, 40, i * 0x40000, L_WQ + i * 1024, p["qflags"])
        self.dma(2, 44, 0, L_X, "")
        self.dma(2, 44, 1024, L_X + 1024, "")
        if p["cpref"]:
            A("s_getpc_b64 s[30:31]")
            self.lab("L_pc")
            A("s_lshr_b32 s71, s2, 3")
            A("s_lshl_b32 s71, s71, 10")
            A("s_min_u32 s71, s71, L_end-L_pc-1020")
            A("v_add_u32 v11, s71, v2")
            A("global_load_dwordx4 v[248:251], v11, s[30:31]")
        self.hstamp(2)
        if p["b0"]:
            A("s_barrier")
        self.srd(36, "s28", "s29", WS_USED)
        A("v_lshrrev_b32 v5, 2, v12")
        A("v_lshl_add_u32 v5, v13, 3, v5")
        A("v_and_b32 v6, 3, v12")
        A("v_lshlrev_b32 v3, 5, v5")
        A("v_lshl_or_b32 v3, v6, 3, v3")
        A(f"v_add_u32 v3, {L_WQ:#x}, v3")
        A("v_and_b32 v7, 1, v12")
        A("v_mul_u32_u24 v4, 896, v7")
        A("v_lshl_add_u32 v4, v13, 4, v4")
        A(f"v_add_u32 v4, {L_X:#x}, v4")
        A("v_lshlrev_b32 v8, 14, v7")
        A("v_lshl_or_b32 v8, v13, 4, v8")
        A("s_lshl_b32 s67, s66, 6")
        A(f"s_add_u32 s67, s67, {W_Q:#x}")
        A("v_add_u32 v8, s67, v8")
        A("s_lshl_b32 s67, s54, 11")
        A(f"s_add_u32 s67, s67, {W_Q:#x}")
        A("v_add_u32 v9, s67, v2")
        A("v_lshlrev_b32 v10, 3, v0")
        A(f"v_add_u32 v10, {L_Q:#x}, v10")
        A("s_waitcnt lgkmcnt(0)")
        A("s_add_u32 s76, s58, 2")
        A("s_or_b32 s76, s76, 1")
        A("s_mul_i32 s58, s76, 0x9E3779B1")
        self.hstamp(3)
        A("s_waitcnt vmcnt(0)")
        self.hstamp(4)
        self.stamp(1)
        XB = 16
        WA = 72
        for s in range(14):
            A(f"ds_read_b128 v[{XB+4*s}:{XB+4*s+3}], v4 offset:{s*64}")
            A(f"ds_read_b64_tr_b16 v[{WA+4*s}:{WA+4*s+1}], v3 offset:{s*1024}")
            A(f"ds_read_b64_tr_b16 v[{WA+4*s+2}:{WA+4*s+3}], v3 offset:{s*1024+128}")
            if s >= 4:
                k = s - 4
                A("s_waitcnt lgkmcnt(12)")
                c = "0" if k == 0 else "v[128:131]"
                A(f"v_mfma_f32_16x16x32_bf16 v[128:131], v[{WA+4*k}:{WA+4*k+3}], v[{XB+4*k}:{XB+4*k+3}], {c}")
        for k in range(10, 14):
            A(f"s_waitcnt lgkmcnt({(13-k)*3})")
            A(f"v_mfma_f32_16x16x32_bf16 v[128:131], v[{WA+4*k}:{WA+4*k+3}], v[{XB+4*k}:{XB+4*k+3}], v[128:131]")
        self.nop(8)
        A("v_cvt_pk_bf16_f32 v132, v128, v129")
        A("v_cvt_pk_bf16_f32 v133, v130, v131")
        A("v_bitop3_b32 v134, v132, v133, s58 bitop3:0x96")
        A("v_mov_b32 v135, v134")
        A("s_mov_b32 s64, 0x00030003")
        A("s_mov_b32 s65, 0x00030003")
        A("s_mov_b64 exec, s[64:65]")
        A("buffer_store_dwordx4 v[132:135], v8, s[36:39], 0 offen sc1")
        A("s_mov_b64 exec, -1")
        self.stamp(2)
        self.hstamp(5)
        loads = [f"buffer_load_dwordx4 v[{136+4*i}:{139+4*i}], v9, s[36:39], 0 offen offset:{i*1024} sc1" for i in range(2)]
        if "q" not in p["abl"]:
            self.poll(loads, [[136, 137, 138], [140, 141, 142]], 144)
        A("ds_write_b64 v10, v[136:137]")
        A("ds_write_b64 v10, v[140:141] offset:512")
        A("v_mov_b32 v144, s58")
        A(f"v_mov_b32 v145, {L_TAG:#x}")
        A("ds_write_b32 v145, v144")
        A("s_waitcnt lgkmcnt(0)")
        self.stamp(3)
        self.hstamp(6)
        A("s_barrier")
        A("s_lshl_b32 s67, s57, 4")
        A("s_add_u32 s67, s67, s55")
        def wo_dma():
            self.srd(40, "s12", "s13", 4096 * 896)
            A(f"s_mul_i32 s68, s67, 28672")
            for i in range(28):
                A(f"s_add_u32 s69, s68, {i*1024}")
                self.dma(2, 40, "s69", L_WO + i * 1024)
                if i % 4 == 3:
                    A("s_waitcnt vmcnt(4)")
        if not p["wo_late"]:
            wo_dma()
        A("s_and_b32 s68, s2, 7")
        A("s_lshr_b32 s69, s2, 6")
        A("s_lshl_b32 s69, s69, 3")
        A("s_add_u32 s68, s68, s69")
        A("s_cmp_ge_u32 s68, 28")
        A("s_cbranch_scc1 L_noffn")
        A("s_lshl_b32 s68, s68, 3")
        A("s_bfe_u32 s69, s2, 0x30003")
        A("s_add_u32 s77, s68, s69")
        A("v_mul_u32_u24 v1, 3584, v0")
        A("s_lshl_b32 s68, s77, 4")
        A("v_add_u32 v1, s68, v1")
        self.srd(40, "s16", "s17", 448 * 3584)
        self.srd(44, "s18", "s19", 448 * 3584)
        for i in range(7):
            self.dma(1, 40, i * 64 * 3584, L_W1 + i * 1024, p["fflags"])
            if p["fpace"] is not None:
                A(f"s_waitcnt vmcnt({p['fpace']})")
            self.dma(1, 44, i * 64 * 3584, L_W3 + i * 1024, p["fflags"])
            if p["fpace"] is not None:
                A(f"s_waitcnt vmcnt({p['fpace']})")
        self.srd(48, "s20", "s21", 1792 * 896)
        A("s_mul_i32 s68, s77, 7168")
        for i in range(7):
            A(f"s_add_u32 s69, s68, {i*1024}")
            self.dma(2, 48, "s69", L_W2 + i * 1024)
        A("v_lshrrev_b32 v8, 1, v6")
        A("v_mul_u32_u24 v3, 7168, v8")
        A("v_lshl_add_u32 v3, v5, 4, v3")
        A("v_and_b32 v8, 1, v6")
        A("v_lshl_add_u32 v3, v8, 3, v3")
        A(f"v_add_u32 v3, {L_W1:#x}, v3")
        A("s_waitcnt vmcnt(0)")
        for s in range(14):
            A(f"ds_read_b64_tr_b16 v[{WA+4*s}:{WA+4*s+1}], v3 offset:{s*512}")
            A(f"ds_read_b64_tr_b16 v[{WA+4*s+2}:{WA+4*s+3}], v3 offset:{s*512+64}")
            if s % 7 == 6:
                A("s_waitcnt lgkmcnt(0)")
        for k in range(14):
            c = "0" if k == 0 else "v[128:131]"
            A(f"v_mfma_f32_16x16x32_bf16 v[128:131], v[{WA+4*k}:{WA+4*k+3}], v[{XB+4*k}:{XB+4*k+3}], {c}")
        A("v_and_b32 v8, 1, v13")
        A("v_lshrrev_b32 v9, 2, v12")
        A("v_lshl_add_u32 v8, v8, 2, v9")
        A("v_mul_u32_u24 v3, 896, v8")
        A("v_lshl_add_u32 v3, v6, 3, v3")
        A(f"v_add_u32 v3, {L_W2:#x}, v3")
        for t in range(28):
            A(f"ds_read_b64_tr_b16 v[{144+2*t}:{145+2*t}], v3 offset:{t*32}")
            if t % 14 == 13:
                A("s_waitcnt lgkmcnt(0)")
        for i in range(4):
            self.round_bf16(128 + i)
        for i in range(4):
            A(f"v_mov_b32 v{132+i}, v{128+i}")
        self.nop(2)
        for i in range(4):
            A(f"v_permlane32_swap_b32 v{128+i}, v{132+i}")
        self.nop(1)
        for i in range(4):
            A(f"v_mul_f32 v{136+i}, {f2u(-LOG2E):#x}, v{128+i}")
        for i in range(4):
            A(f"v_exp_f32 v{136+i}, v{136+i}")
        self.nop(1)
        for i in range(4):
            A(f"v_add_f32 v{136+i}, 1.0, v{136+i}")
        for i in range(4):
            A(f"v_rcp_f32 v{136+i}, v{136+i}")
        self.nop(1)
        for i in range(4):
            A(f"v_mul_f32 v{128+i}, v{128+i}, v{136+i}")
        for i in range(4):
            self.round_bf16(128 + i)
        for i in range(4):
            A(f"v_mul_f32 v{128+i}, v{128+i}, v{132+i}")
        A("v_cvt_pk_bf16_f32 v128, v128, v129")
        A("v_cvt_pk_bf16_f32 v129, v130, v131")
        for u in range(4):
            m16 = 0xf << (4 * u)
            A(f"s_mov_b32 s64, {m16 | (m16 << 16):#x}")
            A("s_mov_b32 s65, 0")
            A(f"v_cndmask_b32_e64 v{132+2*u}, 0, v128, s[64:65]")
            A(f"v_cndmask_b32_e64 v{133+2*u}, 0, v129, s[64:65]")
        self.nop(2)
        DB = 200
        for u in range(4):
            for t in range(7):
                c = "0" if u == 0 else f"v[{DB+4*t}:{DB+4*t+3}]"
                tl = 7 * u + t
                A(f"v_mfma_f32_16x16x16_bf16 v[{DB+4*t}:{DB+4*t+3}], v[{132+2*u}:{133+2*u}], v[{144+2*tl}:{145+2*tl}], {c}")
        A("v_lshlrev_b32 v8, 13, v0")
        A("s_lshl_b32 s68, s77, 4")
        A(f"s_add_u32 s68, s68, {W_BP:#x}")
        A("v_add_u32 v8, s68, v8")
        self.nop(8)
        for b in range(2):
            o = 232 + 8 * b
            for t in range(7):
                A(f"v_mov_b32 v{o+t}, v{DB+4*t+b}")
            A(f"v_bitop3_b32 v{o+7}, v{o}, v{o+1}, s58 bitop3:0x96")
            A(f"v_bitop3_b32 v{o+7}, v{o+7}, v{o+2}, v{o+3} bitop3:0x96")
            A(f"v_bitop3_b32 v{o+7}, v{o+7}, v{o+4}, v{o+5} bitop3:0x96")
            A(f"v_xor_b32 v{o+7}, v{o+7}, v{o+6}")
            A(f"s_mov_b32 s68, {b*64*8192:#x}")
            A(f"s_mov_b32 s69, {b*64*8192+4096:#x}")
            A(f"buffer_store_dwordx4 v[{o}:{o+3}], v8, s[36:39], s68 offen sc1")
            A(f"buffer_store_dwordx4 v[{o+4}:{o+7}], v8, s[36:39], s69 offen sc1")
        self.lab("L_noffn")
        self.srd(44, "s22", "s23", 896)
        A("buffer_load_dwordx4 v[128:131], v2, s[44:47], 0 offen")
        A("s_mul_i32 s68, s56, 896")
        A(f"s_add_u32 s68, s68, {L_X:#x}")
        A("v_add_u32 v8, s68, v2")
        A("ds_read_b128 v[132:135], v8")
        A("s_waitcnt vmcnt(0) lgkmcnt(0)")
        for d in range(4):
            A(f"v_lshlrev_b32 v136, 16, v{128+d}")
            A(f"v_and_b32 v137, s62, v{128+d}")
            A(f"v_lshlrev_b32 v138, 16, v{132+d}")
            A(f"v_and_b32 v139, s62, v{132+d}")
            A("v_mul_f32 v136, v136, v138")
            A("v_mul_f32 v137, v137, v139")
            A("v_cvt_pk_bf16_f32 v137, v136, v137")
            A("v_lshlrev_b32 v136, 16, v137")
            A("v_and_b32 v137, s62, v137")
            if d == 0:
                A("v_add_f32 v140, v136, v137")
            else:
                A("v_add_f32 v140, v140, v136")
                A("v_add_f32 v140, v140, v137")
        A("s_mov_b32 s64, -1")
        A("s_mov_b32 s65, 0x00ffffff")
        A("v_cndmask_b32_e64 v140, 0, v140, s[64:65]")
        self.row_allreduce("v_add_f32", [140])
        self.swap_allreduce("v_add_f32", [140], [141], 16)
        self.swap_allreduce("v_add_f32", [140], [141], 32)
        self.round_bf16(140)
        A(f"v_mul_f32 v140, {f2u(-LOG2E):#x}, v140")
        A("v_exp_f32 v140, v140")
        self.nop(1)
        A("v_add_f32 v140, 1.0, v140")
        A("v_rcp_f32 v14, v140")
        self.nop(1)
        self.round_bf16(14)
        A("v_sub_f32 v15, 1.0, v14")
        self.round_bf16(15)
        self.stamp(4)
        A("s_waitcnt vmcnt(0)")
        if "b2" not in p["abl"]:
            A("s_barrier")
        A("v_lshlrev_b32 v8, 3, v7")
        A(f"v_add_u32 v8, {L_ST:#x}, v8")
        for w in range(4):
            A(f"ds_read_b64 v[{128+2*w}:{129+2*w}], v8 offset:{w*16}")
        A("s_lshl_b32 s68, s54, 9")
        A(f"s_add_u32 s68, s68, {W_ST:#x}")
        A("s_lshl_b32 s69, s55, 5")
        A("s_add_u32 s69, s69, s68")
        A("v_lshlrev_b32 v9, 4, v7")
        A("v_add_u32 v9, s69, v9")
        A("v_and_b32 v10, 31, v0")
        A("v_lshlrev_b32 v10, 4, v10")
        A("v_add_u32 v10, s68, v10")
        A("s_waitcnt lgkmcnt(0)")
        A("v_max3_f32 v136, v128, v130, v132")
        A("v_max_f32 v136, v136, v134")
        for w in range(4):
            A(f"v_sub_f32 v{140+w}, v{128+2*w}, v136")
        for w in range(4):
            A(f"v_exp_f32 v{140+w}, v{140+w}")
        self.nop(1)
        A("v_mul_f32 v137, v140, v129")
        for w in range(1, 4):
            A(f"v_fmac_f32 v137, v{140+w}, v{129+2*w}")
        A("v_bitop3_b32 v138, v136, v137, s58 bitop3:0x96")
        A("v_mov_b32 v139, v138")
        A("s_mov_b64 exec, 3")
        A("buffer_store_dwordx4 v[136:139], v9, s[36:39], 0 offen sc1")
        A("s_mov_b64 exec, -1")
        if p["wo_late"]:
            wo_dma()
        self.poll(["buffer_load_dwordx4 v[144:147], v10, s[36:39], 0 offen sc1"], [[144, 145, 146]], 148, sleep=8)
        A("v_mov_b32 v148, v144")
        self.row_allreduce("v_max_f32", [148], steps=(8, 4, 2))
        self.swap_allreduce("v_max_f32", [148], [149], 16)
        A("v_sub_f32 v144, v144, v148")
        A("v_exp_f32 v144, v144")
        self.nop(1)
        A("v_mul_f32 v145, v145, v144")
        self.row_allreduce("v_add_f32", [145], steps=(8, 4, 2))
        self.swap_allreduce("v_add_f32", [145], [149], 16)
        A("v_rcp_f32 v145, v145")
        for w in range(4):
            A(f"v_sub_f32 v{140+w}, v{128+2*w}, v148")
        for w in range(4):
            A(f"v_exp_f32 v{140+w}, v{140+w}")
        self.nop(1)
        for w in range(4):
            A(f"v_mul_f32 v{140+w}, v{140+w}, v145")
        A("v_lshlrev_b32 v8, 4, v7")
        A(f"v_add_u32 v8, {L_F:#x}, v8")
        A("s_mov_b64 exec, 3")
        A("ds_write_b128 v8, v[140:143]")
        A("s_mov_b64 exec, -1")
        A("s_cmp_ge_u32 s67, 64")
        A("s_cbranch_scc1 L_notcons")
        A("s_lshl_b32 s68, s56, 6")
        A("s_add_u32 s68, s68, s67")
        A("s_lshl_b32 s69, s68, 13")
        A(f"s_add_u32 s69, s69, {W_BP:#x}")
        A("v_add_u32 v8, s69, v2")
        A("s_mov_b32 s78, 4096")
        A("s_mov_b32 s64, -1")
        A("s_mov_b32 s65, 0")
        loads = []
        groups = []
        for q in range(4):
            o = 128 + 8 * q
            loads.append(f"buffer_load_dwordx4 v[{o}:{o+3}], v8, s[36:39], 0 offen offset:{q*1024} sc1")
            loads.append(f"buffer_load_dwordx4 v[{o+4}:{o+7}], v8, s[36:39], s78 offen offset:{q*1024} sc1")
            regs = list(range(o, o + 8))
            groups.append((regs, "s[64:65]") if q == 3 else regs)
        self.poll(loads, groups, 160, sleep=8)
        for t in range(7):
            A(f"v_cndmask_b32_e64 v{152+t}, 0, v{152+t}, s[64:65]")
        for t in range(7):
            A(f"v_add_f32 v{128+t}, v{128+t}, v{136+t}")
            A(f"v_add_f32 v{144+t}, v{144+t}, v{152+t}")
        for t in range(7):
            A(f"v_add_f32 v{128+t}, v{128+t}, v{144+t}")
        self.reduce7(list(range(128, 135)), 135)
        self.round_bf16(128)
        A("v_mul_f32 v15, v15, v128")
        self.round_bf16(15)
        A("s_lshl_b32 s69, s68, 12")
        A(f"s_add_u32 s69, s69, {W_H2:#x}")
        A("v_add_u32 v8, s69, v2")
        self.srd(48, "s24", "s25", 1792)
        A("s_lshr_b32 s69, s67, 4")
        A("s_mul_i32 s69, s69, 112")
        A("s_and_b32 s71, s67, 15")
        A("s_add_u32 s69, s69, s71")
        A("s_lshl_b32 s69, s69, 1")
        A("s_mul_i32 s71, s56, 896")
        A("s_add_u32 s69, s69, s71")
        A("v_lshrrev_b32 v9, 3, v0")
        A("v_lshlrev_b32 v9, 5, v9")
        A("v_add_u32 v9, s69, v9")
        self.stamp(5)
        A("s_waitcnt lgkmcnt(0)")
        A("s_barrier")
        loads = []
        for q in range(2):
            o = 128 + 8 * q
            loads.append(f"buffer_load_dwordx4 v[{o}:{o+3}], v8, s[36:39], 0 offen offset:{q*1024} sc1")
            loads.append(f"buffer_load_dwordx4 v[{o+4}:{o+7}], v8, s[36:39], 0 offen offset:{2048+q*1024} sc1")
        self.tstamp(3)
        self.poll(loads, [list(range(128, 136)), list(range(136, 144))], 160)
        self.stamp(6)
        self.tstamp(5)
        for t in range(7):
            A(f"v_add_f32 v{128+t}, v{128+t}, v{136+t}")
        self.reduce7(list(range(128, 135)), 135)
        self.round_bf16(128)
        A("v_mul_f32 v128, v14, v128")
        self.round_bf16(128)
        A("v_add_f32 v128, v128, v15")
        A("v_cvt_pk_bf16_f32 v128, v128, v128")
        A("s_mov_b32 s64, 0x01010101")
        A("s_mov_b32 s65, 0x00010101")
        A("s_mov_b64 exec, s[64:65]")
        A("buffer_store_short v128, v9, s[48:51], 0 offen")
        A("s_cmp_lg_u32 s68, 0")
        A("s_cbranch_scc1 L_hend")
        A("s_mov_b64 exec, 1")
        A("v_mov_b32 v130, s76")
        A("v_mov_b32 v131, 0")
        A("buffer_store_dword v130, v131, s[36:39], 0 offen sc1")
        A("s_branch L_hend")
        self.lab("L_notcons")
        A("s_waitcnt lgkmcnt(0)")
        A("s_barrier")
        self.lab("L_hend")
        self.write_stamps()


if __name__ == "__main__":
    import json
    out = sys.argv[1]
    kw = json.loads(sys.argv[2]) if len(sys.argv) > 2 else {}
    open(out, "w").write(G(**kw).gen())
```

```python
import sys, math, struct

KNAME = "gated_mix__gqa_block_cached__glu_gated_swiglu__decode_kernel"

HEADER = """; Kernarg layout for this problem (104 bytes, ptrs only, base s[0:1]):
"""

L_SC = 0x0000
L_Q = 0x4000
L_TAG = 0x4400
L_F = 0x4420
L_ST = 0x4480
L_X = 0x4800
L_PART = 0x5000
L_WQ = 0x7000
L_W1 = 0xA800
L_W3 = 0xC400
L_W2 = 0xE000
L_WO = 0x10000
LDS_BYTES = 0x17000

W_EPOCH = 0
W_Q = 0x1000
W_ST = 0x10000
W_H1 = 0x100000
W_H2 = 0x200000
W_BP = 0x300000
W_FP = 0x80000
WS_USED = 0x400000

def f2u(f):
    return struct.unpack("<I", struct.pack("<f", f))[0]

LOG2E = 1.4426950408889634

class G:
    def __init__(self, **p):
        self.L = []
        self.p = dict(pace=10, stamps=False, round_scores=True, spin=0x40000, kflags="nt", vflags="nt",
                      mapping="x128", b0=True, wflags="", qflags="", abl="", cpref=True, fflags=None, dbgtime=False, hst=False, fpace=2, wo_late=True, caps=(6,), vcaps=None, tst=False, h1sleep=2, h2sleep=2, b4=True)
        self.p.update(p)
        self.nlab = 0
        self.nstamp = 0

    def A(self, s):
        self.L.append("    " + s)

    def lab(self, name):
        self.L.append(name + ":")

    def newlab(self, base):
        self.nlab += 1
        return f"L_{base}{self.nlab}"

    def nop(self, n):
        if n > 0:
            self.A(f"s_nop {n-1}")

    def hstamp(self, k):
        if self.p["hst"]:
            self.A(f"s_memrealtime s[{80+2*k}:{81+2*k}]")

    def stamp(self, k):
        if (self.p["hst"] or self.p["tst"]) and k not in (0, 7):
            return
        if self.p["stamps"] or self.p["dbgtime"]:
            self.A(f"s_memrealtime s[{80+2*k}:{81+2*k}]")

    def write_stamps(self):
        A = self.A
        if self.p["dbgtime"]:
            self.stamp(7)
            A("s_mov_b64 exec, 1")
            A("s_waitcnt vmcnt(0) lgkmcnt(0)")
            A("s_not_b32 s80, s80")
            A("s_cmp_eq_u32 s3, 4")
            A("s_cselect_b32 s68, 32, 0")
            A("v_mov_b32 v12, s68")
            for k in range(8):
                A(f"v_mov_b32 v13, s{80+2*k}")
                A(f"global_atomic_umax v12, v13, s[26:27] offset:{4*k}")
            return
        if not self.p["stamps"]:
            return
        self.stamp(7)
        A("s_mov_b64 exec, -1")
        A("s_mul_i32 s68, s2, 5")
        A("s_add_u32 s68, s68, s3")
        A("s_lshl_b32 s69, s68, 4")
        A("s_add_u32 s69, s69, 0x20000000")
        A("s_lshl_b32 s68, s68, 7")
        A("s_add_u32 s68, s68, 0x21000000")
        A("s_waitcnt vmcnt(0) lgkmcnt(0)")
        A("v_mov_b32 v12, s69")
        A("v_mov_b32 v13, s68")
        for i in range(16):
            A(f"v_mov_b32 v{16+i}, s{80+i}")
        A("v_mov_b32 v32, s80"); A("v_mov_b32 v33, s81"); A("v_mov_b32 v34, s94"); A("v_mov_b32 v35, s95")
        A("s_mov_b64 exec, 1")
        A("global_store_dwordx4 v12, v[32:35], s[28:29]")
        for i in range(4):
            A(f"global_store_dwordx4 v13, v[{16+4*i}:{19+4*i}], s[28:29] offset:{16*i}")
        A("s_waitcnt vmcnt(0)")

    def row_allreduce(self, op, regs, steps=(8, 4, 2, 1)):
        A = self.A
        self.nop(2)
        for st in steps:
            for r in regs:
                A(f"{op}_dpp v{r}, v{r}, v{r} row_ror:{st} row_mask:0xf bank_mask:0xf")
            if len(regs) < 3:
                self.nop(3 - len(regs))

    def swap_allreduce(self, op, regs, tmps, which):
        A = self.A
        for r, t in zip(regs, tmps):
            A(f"v_mov_b32 v{t}, v{r}")
        self.nop(2)
        for r, t in zip(regs, tmps):
            A(f"v_permlane{which}_swap_b32 v{r}, v{t}")
        self.nop(1)
        for r, t in zip(regs, tmps):
            A(f"{op} v{r}, v{r}, v{t}")

    def round_bf16(self, r, t=None):
        A = self.A
        A(f"v_cvt_pk_bf16_f32 v{r}, v{r}, v{r}")
        A(f"v_and_b32 v{r}, s62, v{r}")

    def reduce7(self, v, z):
        A = self.A
        A(f"v_mov_b32 v{z}, 0")
        w = list(v) + [z]
        self.nop(2)
        for i in range(4):
            A(f"v_permlane32_swap_b32 v{w[i]}, v{w[i+4]}")
        self.nop(1)
        for i in range(4):
            A(f"v_add_f32 v{w[i]}, v{w[i]}, v{w[i+4]}")
        self.nop(2)
        for i in range(2):
            A(f"v_permlane16_swap_b32 v{w[i]}, v{w[i+2]}")
        self.nop(1)
        for i in range(2):
            A(f"v_add_f32 v{w[i]}, v{w[i]}, v{w[i+2]}")
        self.nop(2)
        A(f"v_add_f32_dpp v{w[0]}, v{w[0]}, v{w[0]} row_ror:8 row_mask:0xf bank_mask:0x3")
        A(f"v_add_f32_dpp v{w[0]}, v{w[1]}, v{w[1]} row_ror:8 row_mask:0xf bank_mask:0xc")
        self.nop(2)
        A(f"v_add_f32_dpp v{w[0]}, v{w[0]}, v{w[0]} row_half_mirror row_mask:0xf bank_mask:0xf")
        self.nop(2)
        A(f"v_add_f32_dpp v{w[0]}, v{w[0]}, v{w[0]} quad_perm:[1,0,3,2] row_mask:0xf bank_mask:0xf")
        self.nop(2)
        A(f"v_add_f32_dpp v{w[0]}, v{w[0]}, v{w[0]} quad_perm:[2,3,0,1] row_mask:0xf bank_mask:0xf")

    def srd(self, d, lo, hi, nbytes):
        A = self.A
        A(f"s_mov_b32 s{d}, {lo}")
        A(f"s_mov_b32 s{d+1}, {hi}")
        A(f"s_mov_b32 s{d+2}, {nbytes:#x}")
        A(f"s_mov_b32 s{d+3}, 0x00020000")

    def poll(self, loads, groups, tmp, sleep=0, masked=False):
        A = self.A
        lp = self.newlab("poll")
        done = self.newlab("pdone")
        A(f"s_mov_b32 s70, {self.p['spin']:#x}")
        self.lab(lp)
        for l in loads:
            A(l)
        A("s_waitcnt vmcnt(0)")
        first = True
        for gi, g in enumerate(groups):
            mask = None
            if isinstance(g, tuple):
                g, mask = g
            regs = list(g)
            t = tmp + gi
            if len(regs) == 3:
                A(f"v_bitop3_b32 v{t}, v{regs[0]}, v{regs[1]}, v{regs[2]} bitop3:0x96")
            else:
                A(f"v_bitop3_b32 v{t}, v{regs[0]}, v{regs[1]}, v{regs[2]} bitop3:0x96")
                rest = regs[3:]
                while len(rest) >= 2:
                    A(f"v_bitop3_b32 v{t}, v{t}, v{rest[0]}, v{rest[1]} bitop3:0x96")
                    rest = rest[2:]
                if rest:
                    A(f"v_xor_b32 v{t}, v{t}, v{rest[0]}")
            dst = "s[72:73]" if first else "s[74:75]"
            A(f"v_cmp_ne_u32_e64 {dst}, s58, v{t}")
            if mask is not None:
                A(f"s_and_b64 {dst}, {dst}, {mask}")
            if not first:
                A("s_or_b64 s[72:73], s[72:73], s[74:75]")
            first = False
        A("s_cmp_eq_u64 s[72:73], 0")
        A(f"s_cbranch_scc1 {done}")
        if masked:
            A("s_mov_b64 exec, s[72:73]")
        if sleep:
            A(f"s_sleep {sleep}")
        A("s_sub_u32 s70, s70, 1")
        A("s_cmp_lg_u32 s70, 0")
        A(f"s_cbranch_scc1 {lp}")
        self.lab(done)
        if masked:
            A("s_mov_b64 exec, -1")

    def gen(self):
        A = self.A
        p = self.p
        L = self.L
        L.append(HEADER + f"; @launch grid=(256,1,1) block=(320,1,1) lds={LDS_BYTES}")
        L.append('.amdgcn_target "amdgcn-amd-amdhsa--gfx950"')
        L.append(".text")
        L.append(f".globl {KNAME}")
        L.append(".p2align 8")
        L.append(f".type {KNAME},@function")
        self.lab(KNAME)
        A("s_cmp_ge_u32 s2, 256")
        A("s_cbranch_scc1 L_end")
        A("s_load_dwordx16 s[4:19], s[0:1], 0")
        A("s_load_dwordx8 s[20:27], s[0:1], 64")
        A("s_load_dwordx2 s[28:29], s[0:1], 96")
        if p["dbgtime"]:
            for k in range(1, 8):
                A(f"s_mov_b32 s{80+2*k}, 0")
        self.stamp(0)
        A("v_lshrrev_b32 v1, 6, v0")
        A("v_and_b32 v0, 63, v0")
        A("v_readfirstlane_b32 s3, v1")
        if p["mapping"] == "x128":
            A("s_and_b32 s52, s2, 127")
            A("s_lshr_b32 s53, s2, 7")
        elif p["mapping"] == "x128b":
            A("s_and_b32 s52, s2, 7")
            A("s_lshl_b32 s52, s52, 4")
            A("s_bfe_u32 s53, s2, 0x40003")
            A("s_add_u32 s52, s52, s53")
            A("s_lshr_b32 s53, s2, 7")
        A("s_lshr_b32 s54, s52, 3")
        A("s_and_b32 s55, s52, 7")
        A("s_lshl_b32 s55, s55, 1")
        A("s_add_u32 s55, s55, s53")
        A("s_lshr_b32 s56, s54, 3")
        A("s_and_b32 s57, s54, 7")
        A("s_mov_b32 s62, 0xffff0000")
        A("s_cmp_lg_u32 s3, 4")
        A("s_cbranch_scc1 L_stream")
        self.helper()
        A("s_endpgm")
        self.lab("L_stream")
        self.stream()
        self.lab("L_end")
        A("s_endpgm")
        L.append('.section .rodata,"a"')
        L.append(".p2align 6")
        L.append(f".amdhsa_kernel {KNAME}")
        L.append("  .amdhsa_next_free_vgpr 256")
        L.append("  .amdhsa_next_free_sgpr 102")
        L.append("  .amdhsa_accum_offset 256")
        L.append("  .amdhsa_group_segment_fixed_size 0")
        L.append("  .amdhsa_kernarg_size 104")
        L.append("  .amdhsa_user_sgpr_count 2")
        L.append("  .amdhsa_user_sgpr_kernarg_segment_ptr 1")
        L.append("  .amdhsa_system_sgpr_workgroup_id_x 1")
        L.append("  .amdhsa_float_denorm_mode_32 3")
        L.append(".end_amdhsa_kernel")
        return "\n".join(L) + "\n"

    def ring(self, rp, s, j):
        return 128 + ((rp * 2 + s) * 4 + j) * 4

    def ldk(self, rp, s, j):
        r = self.ring(rp, s, j)
        sb = "s61" if s else "s60"
        self.A(f"buffer_load_dwordx4 v[{r}:{r+3}], v1, s[32:35], {sb} offen offset:{j*128} {self.p['kflags']}")

    def vring(self, rp, s, j):
        return 64 + ((rp * 2 + s) * 4 + j) * 4

    def ldv(self, rp, s, j, s0="s60", s1="s61"):
        r = self.vring(rp, s, j)
        sb = s1 if s else s0
        self.A(f"buffer_load_dwordx4 v[{r}:{r+3}], v2, s[40:43], {sb} offen offset:{j*1024} {self.p['vflags']}")

    def tstamp(self, k):
        if self.p["tst"]:
            self.A(f"s_memrealtime s[{80+2*k}:{81+2*k}]")

    def stream(self):
        A = self.A
        p = self.p
        caps = list(p["caps"])
        vcaps = list(p["vcaps"] or caps)
        cmax = max(caps)
        A("v_and_b32 v12, 15, v0")
        A("v_lshrrev_b32 v13, 4, v0")
        A("v_lshrrev_b32 v14, 1, v12")
        A("v_lshlrev_b32 v1, 9, v14")
        A("v_and_b32 v15, 1, v12")
        A("v_lshl_or_b32 v1, v15, 6, v1")
        A("v_lshl_or_b32 v1, v13, 4, v1")
        A("s_lshl_b32 s66, s53, 2")
        A("s_add_u32 s66, s66, s3")
        A("s_lshl_b32 s66, s66, 13")
        A("s_lshl_b32 s67, s52, 21")
        A("s_mov_b32 s60, s66")
        A("s_mov_b32 s34, 0x200000")
        A("s_mov_b32 s35, 0x00020000")
        A("s_waitcnt lgkmcnt(0)")
        A("s_add_u32 s32, s6, s67")
        A("s_addc_u32 s33, s7, 0")
        self.hstamp(1)
        if p["b0"]:
            A("s_barrier")
        self.hstamp(2)
        n = 0
        for rp in range(4):
            A("s_add_u32 s61, s60, 4096")
            for s in range(2):
                for j in range(4):
                    if n == cmax:
                        self.hstamp(3)
                    if n >= cmax:
                        A(f"s_waitcnt vmcnt({caps[n % len(caps)]-1})")
                    if n == cmax:
                        self.hstamp(4)
                    if n == cmax + 9:
                        self.hstamp(5)
                    self.ldk(rp, s, j)
                    n += 1
                    if n == cmax:
                        self.stream_setup()
            A("s_add_u32 s60, s60, 0x10000")
        self.stamp(1)
        self.hstamp(6)
        A("s_barrier")
        for j in range(4):
            A(f"ds_read_b128 v[{16+4*j}:{19+4*j}], v12 offset:{j*128}")
        A(f"ds_read_b32 v13, v13")
        A("s_mov_b32 s59, 0")
        A("s_waitcnt lgkmcnt(0)")
        A("v_readfirstlane_b32 s58, v13")
        self.stamp(2)
        def kset(rp, s, mid):
            d = 32 + 4 * s
            for j in range(4):
                r = self.ring(rp, s, j)
                c = "0" if j == 0 else f"v[{d}:{d+3}]"
                A(f"v_mfma_f32_16x16x32_bf16 v[{d}:{d+3}], v[{16+4*j}:{19+4*j}], v[{r}:{r+3}], {c}")
            k = mid()
            self.nop(max(0, 8 - k))
            t = 40 + 2 * s
            A(f"v_add_f32_dpp v{t}, v{d+1}, v{d} quad_perm:[1,1,3,3] row_mask:0xf bank_mask:0xf")
            A(f"v_add_f32_dpp v{t+1}, v{d+3}, v{d+2} quad_perm:[1,1,3,3] row_mask:0xf bank_mask:0xf")
            if s == 1:
                A("s_mov_b64 exec, 0x5555")
                A(f"ds_write_b128 v4, v[40:43] offset:{rp*128}")
                A("s_mov_b64 exec, -1")
        self.lab("L_kloop")
        n = 0
        for rp in range(4):
            A("s_add_u32 s61, s60, 4096")
            for s in range(2):
                def mid():
                    nonlocal n
                    for j in range(4):
                        A(f"s_waitcnt vmcnt({caps[n % len(caps)]-1})")
                        self.ldk(rp, s, j)
                        n += 1
                    return 8
                kset(rp, s, mid)
            A("s_add_u32 s60, s60, 0x10000")
        A("v_add_u32 v4, 512, v4")
        A("s_add_u32 s59, s59, 1")
        A("s_cmp_lt_u32 s59, 7")
        A("s_cbranch_scc1 L_kloop")
        A("s_mov_b32 s60, s66")
        A("s_add_u32 s61, s60, 4096")
        A("s_add_u32 s68, s60, 0x10000")
        A("s_add_u32 s69, s60, 0x11000")
        vseq = [(rp, s, j) for rp in range(2) for s in range(2) for j in range(4)]
        nv = 0
        def vissue(paced):
            nonlocal nv
            rp, s, j = vseq[nv]
            if paced:
                A(f"s_waitcnt vmcnt({cmax-1})")
            if rp == 0:
                self.ldv(rp, s, j)
            else:
                self.ldv(rp, s, j, "s68", "s69")
            nv += 1
        assert cmax <= 8
        for rp in range(4):
            for s in range(2):
                idx = rp * 2 + s
                def mid():
                    if idx < 5:
                        vissue(True)
                        return 2
                    if idx == 5:
                        while nv < cmax:
                            vissue(True)
                        A(f"s_waitcnt vmcnt({nv})")
                        while nv < 16:
                            vissue(False)
                        return 8
                    return 0
                kset(rp, s, mid)
        A("s_add_u32 s60, s60, 0x20000")
        self.stamp(3)
        S = 128
        A("s_waitcnt lgkmcnt(0)")
        for i in range(4):
            A(f"ds_read_b128 v[{S+4*i}:{S+4*i+3}], v14 offset:{i*1024}")
        A(f"s_mov_b32 s63, {f2u(LOG2E/16):#x}")
        A("s_waitcnt lgkmcnt(0)")
        if p["round_scores"]:
            for i in range(8):
                a, b = S + 2 * i, S + 2 * i + 1
                A(f"v_cvt_pk_bf16_f32 v{b}, v{a}, v{b}")
                A(f"v_lshlrev_b32 v{a}, 16, v{b}")
                A(f"v_and_b32 v{b}, s62, v{b}")
        m = [148, 150]
        T2 = [152, 153]
        for h in range(2):
            A(f"v_max3_f32 v{m[h]}, v{S+h}, v{S+2+h}, v{S+4+h}")
            A(f"v_max3_f32 v{m[h]}, v{m[h]}, v{S+6+h}, v{S+8+h}")
            A(f"v_max3_f32 v{m[h]}, v{m[h]}, v{S+10+h}, v{S+12+h}")
            A(f"v_max_f32 v{m[h]}, v{m[h]}, v{S+14+h}")
        self.row_allreduce("v_max_f32", m)
        self.swap_allreduce("v_max_f32", m, T2, 16)
        self.swap_allreduce("v_max_f32", m, T2, 32)
        for h in range(2):
            A(f"v_mul_f32 v{m[h]}, s63, v{m[h]}")
        for i in range(16):
            A(f"v_fma_f32 v{S+i}, v{S+i}, s63, -v{m[i&1]}")
        for i in range(16):
            A(f"v_exp_f32 v{S+i}, v{S+i}")
        l = [149, 151]
        self.nop(1)
        for i in range(4):
            A(f"ds_write_b128 v14, v[{S+4*i}:{S+4*i+3}] offset:{i*1024}")
        for h in range(2):
            A(f"v_add_f32 v{l[h]}, v{S+h}, v{S+2+h}")
            for i in range(2, 8):
                A(f"v_add_f32 v{l[h]}, v{l[h]}, v{S+2*i+h}")
        A("s_waitcnt lgkmcnt(0)")
        PB = 160
        for j in range(4):
            A(f"ds_read_b128 v[{PB+4*j}:{PB+4*j+3}], v5 offset:{j*32}")
        self.row_allreduce("v_add_f32", l)
        self.swap_allreduce("v_add_f32", l, T2, 16)
        self.swap_allreduce("v_add_f32", l, T2, 32)
        A("s_mov_b64 exec, 1")
        A("ds_write_b128 v15, v[148:151]")
        A("s_mov_b64 exec, -1")
        AC = 16
        for i in range(16):
            A(f"v_mov_b32 v{AC+i}, 0")
        A("s_mov_b32 s59, 0")
        A("s_waitcnt lgkmcnt(0)")
        if "b2" not in p["abl"]:
            A("s_barrier")
        A("s_waitcnt vmcnt(15)")
        self.stamp(4)
        def vbody(last):
            n = 0
            for rp in range(2):
                P = PB + 16 * rp
                Pn = PB + 16 * (1 - rp)
                if not last:
                    A("s_add_u32 s61, s60, 4096")
                A("s_waitcnt lgkmcnt(0)")
                if not (last and rp == 1):
                    for j in range(4):
                        A(f"ds_read_b128 v[{Pn+4*j}:{Pn+4*j+3}], v5 offset:{(rp+1)*128 + j*32}")
                for s in range(2):
                    for j in range(4):
                        r = self.vring(rp, s, j)
                        if last and 15 - n < max(vcaps):
                            A(f"s_waitcnt vmcnt({15 - n})")
                        for d in range(4):
                            A(f"v_lshlrev_b32 v{52+2*d}, 16, v{r+d}")
                            A(f"v_and_b32 v{53+2*d}, s62, v{r+d}")
                        pp = P + 4 * j + 2 * s
                        for h in range(2):
                            for d in range(4):
                                a = AC + h * 8 + 2 * d
                                A(f"v_pk_fma_f32 v[{a}:{a+1}], v[{52+2*d}:{53+2*d}], v[{pp}:{pp+1}], v[{a}:{a+1}] op_sel:[0,{h},0] op_sel_hi:[1,{h},1]")
                        if not last:
                            A(f"s_waitcnt vmcnt({vcaps[n % len(vcaps)]-1})")
                            self.ldv(rp, s, j)
                        n += 1
                if not last:
                    A("s_add_u32 s60, s60, 0x10000")
        self.lab("L_vloop")
        vbody(False)
        A("v_add_u32 v5, 256, v5")
        A("s_add_u32 s59, s59, 1")
        A("s_cmp_lt_u32 s59, 15")
        A("s_cbranch_scc1 L_vloop")
        vbody(True)
        self.stamp(5)
        self.tstamp(1)
        self.nop(2)
        for e in range(8):
            A(f"v_permlane32_swap_b32 v{AC+e}, v{AC+8+e}")
        for e in range(8):
            A(f"v_add_f32 v{AC+e}, v{AC+e}, v{AC+8+e}")
        A(f"ds_write_b128 v9, v[{AC}:{AC+3}]")
        A(f"ds_write_b128 v9, v[{AC+4}:{AC+7}] offset:16")
        A("s_waitcnt lgkmcnt(0)")
        self.tstamp(2)
        A("s_barrier")
        self.tstamp(3)
        for w in range(4):
            A(f"ds_read_b64 v[{80+2*w}:{81+2*w}], v10 offset:{w*2048}")
        A("ds_read_b128 v[88:91], v60")
        def wot(t):
            A(f"ds_read_b64_tr_b16 v[{128+4*t}:{129+4*t}], v11 offset:{t*32}")
            A(f"ds_read_b64_tr_b16 v[{130+4*t}:{131+4*t}], v11 offset:{t*32+4*896}")
        A("s_waitcnt lgkmcnt(0)")
        A("v_pk_mul_f32 v[92:93], v[80:81], v[88:89] op_sel:[0,0] op_sel_hi:[1,0]")
        A("v_pk_fma_f32 v[92:93], v[82:83], v[88:89], v[92:93] op_sel:[0,1,0] op_sel_hi:[1,1,1]")
        A("v_pk_fma_f32 v[92:93], v[84:85], v[90:91], v[92:93] op_sel:[0,0,0] op_sel_hi:[1,0,1]")
        A("v_pk_fma_f32 v[92:93], v[86:87], v[90:91], v[92:93] op_sel:[0,1,0] op_sel_hi:[1,1,1]")
        A("v_bitop3_b32 v94, v92, v93, s58 bitop3:0x96")
        A("v_mov_b32 v95, v94")
        A("buffer_store_dwordx4 v[92:95], v6, s[36:39], 0 offen sc1")
        self.tstamp(4)
        for t in range(7):
            wot(t)
        X = 96
        loads = [f"buffer_load_dwordx4 v[{X+4*i}:{X+4*i+3}], v7, s[36:39], 0 offen offset:{i*64} sc1" for i in range(4)]
        self.poll(loads, [[X + 4 * i, X + 4 * i + 1, X + 4 * i + 2] for i in range(4)], 112, sleep=p["h1sleep"], masked=True)
        self.stamp(6)
        self.tstamp(5)
        vals = [X + 4 * i + k for i in range(4) for k in range(2)]
        self.row_allreduce("v_add_f32", vals)
        for i in range(4):
            A(f"v_cvt_pk_bf16_f32 v{116+i}, v{X+4*i}, v{X+4*i+1}")
        A("s_waitcnt lgkmcnt(0)")
        self.nop(1)
        for t in range(7):
            A(f"v_mfma_f32_16x16x32_bf16 v[{160+4*t}:{163+4*t}], v[116:119], v[{128+4*t}:{131+4*t}], 0")
        D = [160 + 4 * t for t in range(7)]
        self.nop(8)
        A(f"v_bitop3_b32 v123, v{D[0]}, v{D[1]}, s58 bitop3:0x96")
        A(f"v_bitop3_b32 v123, v123, v{D[2]}, v{D[3]} bitop3:0x96")
        A(f"v_bitop3_b32 v123, v123, v{D[4]}, v{D[5]} bitop3:0x96")
        A(f"v_xor_b32 v123, v123, v{D[6]}")
        for i in range(3):
            A(f"v_cndmask_b32_e64 v{120+i}, v{D[i]}, v{D[4+i]}, s[64:65]")
        A(f"v_cndmask_b32_e64 v123, v{D[3]}, v123, s[64:65]")
        A("s_mov_b32 exec_hi, 0")
        A("buffer_store_dwordx4 v[120:123], v8, s[36:39], 0 offen sc1")
        self.tstamp(6)
        if p["b4"] and p["stamps"]:
            A("s_barrier")
        self.write_stamps()
        A("s_endpgm")

    def stream_setup(self):
        A = self.A
        self.srd(36, "s28", "s29", WS_USED)
        A("s_mov_b32 s64, 0xffff0000")
        A("s_mov_b32 s65, 0")
        A("s_lshl_b32 s68, s3, 12")
        A("v_lshlrev_b32 v4, 4, v14")
        A("v_add_u32 v4, s68, v4")
        A("v_lshlrev_b32 v2, 4, v0")
        A("v_lshrrev_b32 v61, 5, v0")
        A("v_lshlrev_b32 v5, 4, v61")
        A("v_add_u32 v5, s68, v5")
        A("s_add_u32 s40, s8, s67")
        A("s_addc_u32 s41, s9, 0")
        A("s_mov_b32 s42, 0x200000")
        A("s_mov_b32 s43, 0x00020000")
        A("s_lshl_b32 s69, s3, 11")
        A(f"s_add_u32 s69, s69, {L_PART}")
        A("v_lshlrev_b32 v9, 5, v0")
        A("v_add_u32 v9, s69, v9")
        A("s_lshl_b32 s69, s3, 9")
        A(f"s_add_u32 s69, s69, {L_PART}")
        A("v_lshlrev_b32 v10, 3, v0")
        A("v_add_u32 v10, s69, v10")
        A("s_lshr_b32 s69, s3, 1")
        A("s_lshl_b32 s69, s69, 4")
        A(f"s_add_u32 s69, s69, {L_F}")
        A("v_mov_b32 v60, s69")
        A("s_lshl_b32 s69, s54, 4")
        A("s_lshl_b32 s71, s3, 2")
        A("s_add_u32 s69, s69, s71")
        A("s_lshl_b32 s69, s69, 12")
        A("s_lshl_b32 s71, s55, 8")
        A("s_add_u32 s69, s69, s71")
        A(f"s_add_u32 s69, s69, {W_H1:#x}")
        A("v_lshlrev_b32 v6, 12, v13")
        A("v_and_b32 v63, 3, v0")
        A("v_lshl_or_b32 v6, v63, 6, v6")
        A("v_bfe_u32 v63, v0, 2, 2")
        A("v_lshl_or_b32 v6, v63, 4, v6")
        A("v_add_u32 v6, s69, v6")
        A("s_lshl_b32 s69, s54, 4")
        A("s_add_u32 s69, s69, s55")
        A("s_lshl_b32 s69, s69, 12")
        A(f"s_add_u32 s69, s69, {W_H1:#x}")
        A("v_lshlrev_b32 v7, 8, v12")
        A("v_lshl_or_b32 v7, v13, 4, v7")
        A("v_add_u32 v7, s69, v7")
        A("s_lshl_b32 s69, s56, 6")
        A("s_lshl_b32 s71, s3, 4")
        A("s_add_u32 s69, s69, s71")
        A("s_lshl_b32 s69, s69, 12")
        A("s_lshl_b32 s71, s57, 4")
        A("s_add_u32 s71, s71, s55")
        A("s_lshl_b32 s71, s71, 4")
        A("s_add_u32 s69, s69, s71")
        A(f"s_add_u32 s69, s69, {W_H2:#x}")
        A("v_lshlrev_b32 v8, 12, v12")
        A("v_and_b32 v63, 1, v13")
        A("v_lshl_or_b32 v8, v63, 11, v8")
        A("v_add_u32 v8, s69, v8")
        A("v_lshrrev_b32 v63, 2, v12")
        A("v_lshl_add_u32 v63, v13, 3, v63")
        A("v_mul_u32_u24 v11, 896, v63")
        A("v_and_b32 v63, 3, v12")
        A("v_lshl_add_u32 v11, v63, 3, v11")
        A("s_mul_i32 s69, s3, 224")
        A(f"s_add_u32 s69, s69, {L_WO:#x}")
        A("v_add_u32 v11, s69, v11")
        A("v_and_b32 v63, 1, v14")
        A("v_lshlrev_b32 v12, 9, v63")
        A("v_lshl_or_b32 v12, v15, 6, v12")
        A("v_lshl_or_b32 v12, v13, 4, v12")
        A(f"v_add_u32 v12, {L_Q:#x}, v12")
        A(f"v_mov_b32 v13, {L_TAG:#x}")
        A("v_lshlrev_b32 v14, 4, v0")
        A("v_add_u32 v14, s68, v14")
        A("s_lshl_b32 s69, s3, 4")
        A(f"s_add_u32 s69, s69, {L_ST:#x}")
        A("v_mov_b32 v15, s69")

    def dma(self, vaddr, srd, soff, ldsaddr, fl=None):
        if fl is None:
            fl = self.p["wflags"]
            if "w" in self.p["abl"]:
                return
            if "f" in self.p["abl"] and vaddr == 1:
                return
            if "o" in self.p["abl"] and vaddr == 2:
                return
        A = self.A
        A(f"s_mov_b32 m0, {ldsaddr:#x}")
        if isinstance(soff, int):
            if soff == 0:
                so = "0"
                self.nop(1)
            else:
                A(f"s_mov_b32 s71, {soff:#x}")
                so = "s71"
        else:
            so = soff
            self.nop(1)
        A(f"buffer_load_dwordx4 v{vaddr}, s[{srd}:{srd+3}], {so} offen {fl} lds")

    def helper(self):
        A = self.A
        p = self.p
        A("s_setprio 3")
        A("v_and_b32 v12, 15, v0")
        A("v_lshrrev_b32 v13, 4, v0")
        A("s_and_b32 s66, s2, 7")
        A("s_lshr_b32 s67, s2, 5")
        A("s_lshl_b32 s67, s67, 3")
        A("s_or_b32 s66, s66, s67")
        A("s_lshl_b32 s66, s66, 2")
        A("s_bfe_u32 s67, s2, 0x20003")
        A("s_add_u32 s66, s66, s67")
        A("v_lshrrev_b32 v1, 1, v0")
        A("v_lshlrev_b32 v1, 13, v1")
        A("v_and_b32 v2, 1, v0")
        A("v_lshl_or_b32 v1, v2, 4, v1")
        A("s_lshl_b32 s67, s66, 5")
        A("v_add_u32 v1, s67, v1")
        A("v_lshlrev_b32 v2, 4, v0")
        A("s_waitcnt lgkmcnt(0)")
        self.hstamp(1)
        A("s_load_dword s58, s[28:29], 0")
        self.srd(40, "s10", "s11", 448 * 8192)
        self.srd(44, "s4", "s5", 1792)
        for i in range(14):
            self.dma(1, 40, i * 0x40000, L_WQ + i * 1024, p["qflags"])
        self.dma(2, 44, 0, L_X, "")
        self.dma(2, 44, 1024, L_X + 1024, "")
        if p["cpref"]:
            A("s_getpc_b64 s[30:31]")
            self.lab("L_pc")
            A("s_lshr_b32 s71, s2, 3")
            A("s_lshl_b32 s71, s71, 10")
            A("s_min_u32 s71, s71, L_end-L_pc-1020")
            A("v_add_u32 v11, s71, v2")
            A("global_load_dwordx4 v[248:251], v11, s[30:31]")
        self.hstamp(2)
        if p["b0"]:
            A("s_barrier")
        self.srd(36, "s28", "s29", WS_USED)
        A("v_lshrrev_b32 v5, 2, v12")
        A("v_lshl_add_u32 v5, v13, 3, v5")
        A("v_and_b32 v6, 3, v12")
        A("v_lshlrev_b32 v3, 5, v5")
        A("v_lshl_or_b32 v3, v6, 3, v3")
        A(f"v_add_u32 v3, {L_WQ:#x}, v3")
        A("v_and_b32 v7, 1, v12")
        A("v_mul_u32_u24 v4, 896, v7")
        A("v_lshl_add_u32 v4, v13, 4, v4")
        A(f"v_add_u32 v4, {L_X:#x}, v4")
        A("v_lshlrev_b32 v8, 14, v7")
        A("v_lshl_or_b32 v8, v13, 4, v8")
        A("s_lshl_b32 s67, s66, 6")
        A(f"s_add_u32 s67, s67, {W_Q:#x}")
        A("v_add_u32 v8, s67, v8")
        A("s_lshl_b32 s67, s54, 11")
        A(f"s_add_u32 s67, s67, {W_Q:#x}")
        A("v_add_u32 v9, s67, v2")
        A("v_lshlrev_b32 v10, 3, v0")
        A(f"v_add_u32 v10, {L_Q:#x}, v10")
        A("s_waitcnt lgkmcnt(0)")
        A("s_add_u32 s76, s58, 2")
        A("s_or_b32 s76, s76, 1")
        A("s_mul_i32 s58, s76, 0x9E3779B1")
        self.hstamp(3)
        A("s_waitcnt vmcnt(0)")
        self.hstamp(4)
        self.stamp(1)
        XB = 16
        WA = 72
        for s in range(14):
            A(f"ds_read_b128 v[{XB+4*s}:{XB+4*s+3}], v4 offset:{s*64}")
            A(f"ds_read_b64_tr_b16 v[{WA+4*s}:{WA+4*s+1}], v3 offset:{s*1024}")
            A(f"ds_read_b64_tr_b16 v[{WA+4*s+2}:{WA+4*s+3}], v3 offset:{s*1024+128}")
            if s >= 4:
                k = s - 4
                A("s_waitcnt lgkmcnt(12)")
                c = "0" if k == 0 else "v[128:131]"
                A(f"v_mfma_f32_16x16x32_bf16 v[128:131], v[{WA+4*k}:{WA+4*k+3}], v[{XB+4*k}:{XB+4*k+3}], {c}")
        for k in range(10, 14):
            A(f"s_waitcnt lgkmcnt({(13-k)*3})")
            A(f"v_mfma_f32_16x16x32_bf16 v[128:131], v[{WA+4*k}:{WA+4*k+3}], v[{XB+4*k}:{XB+4*k+3}], v[128:131]")
        self.nop(8)
        A("v_cvt_pk_bf16_f32 v132, v128, v129")
        A("v_cvt_pk_bf16_f32 v133, v130, v131")
        A("v_bitop3_b32 v134, v132, v133, s58 bitop3:0x96")
        A("v_mov_b32 v135, v134")
        A("s_mov_b32 s64, 0x00030003")
        A("s_mov_b32 s65, 0x00030003")
        A("s_mov_b64 exec, s[64:65]")
        A("buffer_store_dwordx4 v[132:135], v8, s[36:39], 0 offen sc1")
        A("s_mov_b64 exec, -1")
        self.stamp(2)
        self.hstamp(5)
        loads = [f"buffer_load_dwordx4 v[{136+4*i}:{139+4*i}], v9, s[36:39], 0 offen offset:{i*1024} sc1" for i in range(2)]
        if "q" not in p["abl"]:
            self.poll(loads, [[136, 137, 138], [140, 141, 142]], 144)
        A("ds_write_b64 v10, v[136:137]")
        A("ds_write_b64 v10, v[140:141] offset:512")
        A("v_mov_b32 v144, s58")
        A(f"v_mov_b32 v145, {L_TAG:#x}")
        A("ds_write_b32 v145, v144")
        A("s_waitcnt lgkmcnt(0)")
        self.stamp(3)
        self.hstamp(6)
        A("s_barrier")
        A("s_lshl_b32 s67, s57, 4")
        A("s_add_u32 s67, s67, s55")
        def wo_dma():
            self.srd(40, "s12", "s13", 4096 * 896)
            A(f"s_mul_i32 s68, s67, 28672")
            for i in range(28):
                A(f"s_add_u32 s69, s68, {i*1024}")
                self.dma(2, 40, "s69", L_WO + i * 1024)
                if i % 4 == 3:
                    A("s_waitcnt vmcnt(4)")
        if not p["wo_late"]:
            wo_dma()
        A("s_and_b32 s68, s2, 7")
        A("s_lshr_b32 s69, s2, 6")
        A("s_lshl_b32 s69, s69, 3")
        A("s_add_u32 s68, s68, s69")
        A("s_cmp_ge_u32 s68, 28")
        A("s_cbranch_scc1 L_noffn")
        A("s_lshl_b32 s68, s68, 3")
        A("s_bfe_u32 s69, s2, 0x30003")
        A("s_add_u32 s77, s68, s69")
        A("v_lshrrev_b32 v8, 3, v0")
        A("v_mul_u32_u24 v1, 3584, v8")
        A("v_and_b32 v8, 7, v0")
        A("v_lshl_add_u32 v1, v8, 4, v1")
        A("s_lshl_b32 s68, s68, 4")
        A(f"s_mul_i32 s71, s69, {56*3584}")
        A("s_add_u32 s68, s68, s71")
        A("v_add_u32 v1, s68, v1")
        A("s_mov_b32 s79, s69")
        self.srd(40, "s16", "s17", 448 * 3584)
        self.srd(44, "s18", "s19", 448 * 3584)
        for i in range(7):
            self.dma(1, 40, i * 8 * 3584, L_W1 + i * 1024, p["fflags"])
            self.dma(1, 44, i * 8 * 3584, L_W3 + i * 1024, p["fflags"])
            if p["fpace"] is not None:
                A(f"s_waitcnt vmcnt({p['fpace']})")
        self.srd(48, "s20", "s21", 1792 * 896)
        A("s_mul_i32 s68, s77, 7168")
        for i in range(7):
            A(f"s_add_u32 s69, s68, {i*1024}")
            self.dma(2, 48, "s69", L_W2 + i * 1024)
            if p["fpace"] is not None and i % 2 == 1:
                A(f"s_waitcnt vmcnt({p['fpace']})")
        A("s_mul_i32 s68, s79, 112")
        A("v_add_u32 v8, s68, v4")
        A("v_add_u32 v9, 64, v8")
        A("s_mov_b32 s64, 0")
        A("s_mov_b32 s65, 0xffff0000")
        A(f"v_mov_b32 v10, {L_X+1792:#x}")
        A("v_cndmask_b32_e64 v9, v9, v10, s[64:65]")
        A("ds_read_b128 v[16:19], v8")
        A("ds_read_b128 v[20:23], v9")
        A("v_lshlrev_b32 v3, 7, v5")
        A("v_lshl_add_u32 v3, v6, 3, v3")
        A(f"v_add_u32 v3, {L_W1:#x}, v3")
        A("v_add_u32 v11, 4096, v3")
        A("v_add_u32 v10, 3072, v3")
        A("v_cndmask_b32_e64 v11, v11, v10, s[64:65]")
        A("s_waitcnt lgkmcnt(0)")
        for t in range(8):
            m16 = 3 << (2 * t)
            A(f"s_mov_b32 s64, {m16 | (m16 << 16):#x}")
            A(f"s_mov_b32 s65, {m16 | (m16 << 16):#x}")
            for i in range(8):
                A(f"v_cndmask_b32_e64 v{24+8*t+i}, 0, v{16+i}, s[64:65]")
        A("s_waitcnt vmcnt(0)")
        WB = 144
        for half in range(2):
            for tt in range(4):
                t = half * 4 + tt
                o = half * 7168 + tt * 32
                r = WB + 8 * tt
                A(f"ds_read_b64_tr_b16 v[{r}:{r+1}], v3 offset:{o}")
                A(f"ds_read_b64_tr_b16 v[{r+2}:{r+3}], v3 offset:{o+512}")
                A(f"ds_read_b64_tr_b16 v[{r+4}:{r+5}], v11 offset:{o}")
                if tt == 3:
                    A("s_waitcnt lgkmcnt(0)")
                A(f"ds_read_b64_tr_b16 v[{r+6}:{r+7}], v11 offset:{o+512}")
            A("s_waitcnt lgkmcnt(0)")
            for tt in range(4):
                t = half * 4 + tt
                r = WB + 8 * tt
                for st in range(2):
                    c = "0" if (t == 0 and st == 0) else "v[128:131]"
                    A(f"v_mfma_f32_16x16x32_bf16 v[128:131], v[{r+4*st}:{r+4*st+3}], v[{24+8*t+4*st}:{27+8*t+4*st}], {c}")
            self.nop(8)
        A("v_bfe_u32 v8, v12, 1, 2")
        A("v_lshlrev_b32 v8, 12, v8")
        A("v_lshrrev_b32 v9, 1, v13")
        A("v_lshl_add_u32 v8, v9, 11, v8")
        A("v_lshrrev_b32 v9, 3, v12")
        A("v_lshl_add_u32 v8, v9, 9, v8")
        A("v_and_b32 v9, 1, v13")
        A("v_lshl_add_u32 v8, v9, 8, v8")
        A("v_lshl_add_u32 v8, v7, 4, v8")
        A("s_and_b32 s68, s77, 0xf8")
        A("s_lshl_b32 s68, s68, 11")
        A("s_lshl_b32 s69, s79, 5")
        A("s_add_u32 s68, s68, s69")
        A(f"s_add_u32 s68, s68, {W_FP:#x}")
        A("v_add_u32 v8, s68, v8")
        A("v_mov_b32 v132, v130")
        A("v_mov_b32 v133, v131")
        A("v_bitop3_b32 v130, v128, v129, s58 bitop3:0x96")
        A("v_bitop3_b32 v134, v132, v133, s58 bitop3:0x96")
        A("v_mov_b32 v131, v130")
        A("v_mov_b32 v135, v134")
        A("buffer_store_dwordx4 v[128:131], v8, s[36:39], 0 offen sc1")
        A("buffer_store_dwordx4 v[132:135], v8, s[36:39], 0 offen offset:1024 sc1")
        A("s_lshl_b32 s68, s77, 11")
        A(f"s_add_u32 s68, s68, {W_FP:#x}")
        A("v_add_u32 v9, s68, v2")
        loads = [f"buffer_load_dwordx4 v[{136+4*i}:{139+4*i}], v9, s[36:39], 0 offen offset:{i*1024} sc1" for i in range(2)]
        self.poll(loads, [[136, 137, 138], [140, 141, 142]], 144, sleep=8, masked=True)
        A("v_mov_b32 v128, v136")
        A("v_mov_b32 v129, v137")
        A("v_mov_b32 v130, v140")
        A("v_mov_b32 v131, v141")
        self.row_allreduce("v_add_f32", [128, 129, 130, 131], steps=(8, 4, 2))
        A("v_and_b32 v8, 1, v13")
        A("v_lshrrev_b32 v9, 2, v12")
        A("v_lshl_add_u32 v8, v8, 2, v9")
        A("v_mul_u32_u24 v3, 896, v8")
        A("v_lshl_add_u32 v3, v6, 3, v3")
        A(f"v_add_u32 v3, {L_W2:#x}, v3")
        for t in range(28):
            A(f"ds_read_b64_tr_b16 v[{144+2*t}:{145+2*t}], v3 offset:{t*32}")
            if t % 14 == 13:
                A("s_waitcnt lgkmcnt(0)")
        for i in range(4):
            self.round_bf16(128 + i)
        for i in range(4):
            A(f"v_mov_b32 v{132+i}, v{128+i}")
        self.nop(2)
        for i in range(4):
            A(f"v_permlane32_swap_b32 v{128+i}, v{132+i}")
        self.nop(1)
        for i in range(4):
            A(f"v_mul_f32 v{136+i}, {f2u(-LOG2E):#x}, v{128+i}")
        for i in range(4):
            A(f"v_exp_f32 v{136+i}, v{136+i}")
        self.nop(1)
        for i in range(4):
            A(f"v_add_f32 v{136+i}, 1.0, v{136+i}")
        for i in range(4):
            A(f"v_rcp_f32 v{136+i}, v{136+i}")
        self.nop(1)
        for i in range(4):
            A(f"v_mul_f32 v{128+i}, v{128+i}, v{136+i}")
        for i in range(4):
            self.round_bf16(128 + i)
        for i in range(4):
            A(f"v_mul_f32 v{128+i}, v{128+i}, v{132+i}")
        A("v_cvt_pk_bf16_f32 v128, v128, v129")
        A("v_cvt_pk_bf16_f32 v129, v130, v131")
        for u in range(4):
            m16 = 0xf << (4 * u)
            A(f"s_mov_b32 s64, {m16 | (m16 << 16):#x}")
            A("s_mov_b32 s65, 0")
            A(f"v_cndmask_b32_e64 v{132+2*u}, 0, v128, s[64:65]")
            A(f"v_cndmask_b32_e64 v{133+2*u}, 0, v129, s[64:65]")
        self.nop(2)
        DB = 200
        for u in range(4):
            for t in range(7):
                c = "0" if u == 0 else f"v[{DB+4*t}:{DB+4*t+3}]"
                tl = 7 * u + t
                A(f"v_mfma_f32_16x16x16_bf16 v[{DB+4*t}:{DB+4*t+3}], v[{132+2*u}:{133+2*u}], v[{144+2*tl}:{145+2*tl}], {c}")
        A("v_lshlrev_b32 v8, 13, v0")
        A("s_lshl_b32 s68, s77, 4")
        A(f"s_add_u32 s68, s68, {W_BP:#x}")
        A("v_add_u32 v8, s68, v8")
        self.nop(8)
        for b in range(2):
            o = 232 + 8 * b
            for t in range(7):
                A(f"v_mov_b32 v{o+t}, v{DB+4*t+b}")
            A(f"v_bitop3_b32 v{o+7}, v{o}, v{o+1}, s58 bitop3:0x96")
            A(f"v_bitop3_b32 v{o+7}, v{o+7}, v{o+2}, v{o+3} bitop3:0x96")
            A(f"v_bitop3_b32 v{o+7}, v{o+7}, v{o+4}, v{o+5} bitop3:0x96")
            A(f"v_xor_b32 v{o+7}, v{o+7}, v{o+6}")
            A(f"s_mov_b32 s68, {b*64*8192:#x}")
            A(f"s_mov_b32 s69, {b*64*8192+4096:#x}")
            A(f"buffer_store_dwordx4 v[{o}:{o+3}], v8, s[36:39], s68 offen sc1")
            A(f"buffer_store_dwordx4 v[{o+4}:{o+7}], v8, s[36:39], s69 offen sc1")
        self.lab("L_noffn")
        self.srd(44, "s22", "s23", 896)
        A("buffer_load_dwordx4 v[128:131], v2, s[44:47], 0 offen")
        A("s_mul_i32 s68, s56, 896")
        A(f"s_add_u32 s68, s68, {L_X:#x}")
        A("v_add_u32 v8, s68, v2")
        A("ds_read_b128 v[132:135], v8")
        A("s_waitcnt vmcnt(0) lgkmcnt(0)")
        for d in range(4):
            A(f"v_lshlrev_b32 v136, 16, v{128+d}")
            A(f"v_and_b32 v137, s62, v{128+d}")
            A(f"v_lshlrev_b32 v138, 16, v{132+d}")
            A(f"v_and_b32 v139, s62, v{132+d}")
            A("v_mul_f32 v136, v136, v138")
            A("v_mul_f32 v137, v137, v139")
            A("v_cvt_pk_bf16_f32 v137, v136, v137")
            A("v_lshlrev_b32 v136, 16, v137")
            A("v_and_b32 v137, s62, v137")
            if d == 0:
                A("v_add_f32 v140, v136, v137")
            else:
                A("v_add_f32 v140, v140, v136")
                A("v_add_f32 v140, v140, v137")
        A("s_mov_b32 s64, -1")
        A("s_mov_b32 s65, 0x00ffffff")
        A("v_cndmask_b32_e64 v140, 0, v140, s[64:65]")
        self.row_allreduce("v_add_f32", [140])
        self.swap_allreduce("v_add_f32", [140], [141], 16)
        self.swap_allreduce("v_add_f32", [140], [141], 32)
        self.round_bf16(140)
        A(f"v_mul_f32 v140, {f2u(-LOG2E):#x}, v140")
        A("v_exp_f32 v140, v140")
        self.nop(1)
        A("v_add_f32 v140, 1.0, v140")
        A("v_rcp_f32 v14, v140")
        self.nop(1)
        self.round_bf16(14)
        A("v_sub_f32 v15, 1.0, v14")
        self.round_bf16(15)
        self.stamp(4)
        A("s_waitcnt vmcnt(0)")
        if "b2" not in p["abl"]:
            A("s_barrier")
        A("v_lshlrev_b32 v8, 3, v7")
        A(f"v_add_u32 v8, {L_ST:#x}, v8")
        for w in range(4):
            A(f"ds_read_b64 v[{128+2*w}:{129+2*w}], v8 offset:{w*16}")
        A("s_lshl_b32 s68, s54, 9")
        A(f"s_add_u32 s68, s68, {W_ST:#x}")
        A("s_lshl_b32 s69, s55, 5")
        A("s_add_u32 s69, s69, s68")
        A("v_lshlrev_b32 v9, 4, v7")
        A("v_add_u32 v9, s69, v9")
        A("v_and_b32 v10, 31, v0")
        A("v_lshlrev_b32 v10, 4, v10")
        A("v_add_u32 v10, s68, v10")
        A("s_waitcnt lgkmcnt(0)")
        A("v_max3_f32 v136, v128, v130, v132")
        A("v_max_f32 v136, v136, v134")
        for w in range(4):
            A(f"v_sub_f32 v{140+w}, v{128+2*w}, v136")
        for w in range(4):
            A(f"v_exp_f32 v{140+w}, v{140+w}")
        self.nop(1)
        A("v_mul_f32 v137, v140, v129")
        for w in range(1, 4):
            A(f"v_fmac_f32 v137, v{140+w}, v{129+2*w}")
        A("v_bitop3_b32 v138, v136, v137, s58 bitop3:0x96")
        A("v_mov_b32 v139, v138")
        A("s_mov_b64 exec, 3")
        A("buffer_store_dwordx4 v[136:139], v9, s[36:39], 0 offen sc1")
        A("s_mov_b64 exec, -1")
        if p["wo_late"]:
            wo_dma()
        self.poll(["buffer_load_dwordx4 v[144:147], v10, s[36:39], 0 offen sc1"], [[144, 145, 146]], 148, sleep=8)
        A("v_mov_b32 v148, v144")
        self.row_allreduce("v_max_f32", [148], steps=(8, 4, 2))
        self.swap_allreduce("v_max_f32", [148], [149], 16)
        A("v_sub_f32 v144, v144, v148")
        A("v_exp_f32 v144, v144")
        self.nop(1)
        A("v_mul_f32 v145, v145, v144")
        self.row_allreduce("v_add_f32", [145], steps=(8, 4, 2))
        self.swap_allreduce("v_add_f32", [145], [149], 16)
        A("v_rcp_f32 v145, v145")
        for w in range(4):
            A(f"v_sub_f32 v{140+w}, v{128+2*w}, v148")
        for w in range(4):
            A(f"v_exp_f32 v{140+w}, v{140+w}")
        self.nop(1)
        for w in range(4):
            A(f"v_mul_f32 v{140+w}, v{140+w}, v145")
        A("v_lshlrev_b32 v8, 4, v7")
        A(f"v_add_u32 v8, {L_F:#x}, v8")
        A("s_mov_b64 exec, 3")
        A("ds_write_b128 v8, v[140:143]")
        A("s_mov_b64 exec, -1")
        A("s_cmp_ge_u32 s67, 64")
        A("s_cbranch_scc1 L_notcons")
        A("s_lshl_b32 s68, s56, 6")
        A("s_add_u32 s68, s68, s67")
        A("s_lshl_b32 s69, s68, 13")
        A(f"s_add_u32 s69, s69, {W_BP:#x}")
        A("v_add_u32 v8, s69, v2")
        A("s_mov_b32 s78, 4096")
        A("s_mov_b32 s64, -1")
        A("s_mov_b32 s65, 0")
        loads = []
        groups = []
        for q in range(4):
            o = 128 + 8 * q
            loads.append(f"buffer_load_dwordx4 v[{o}:{o+3}], v8, s[36:39], 0 offen offset:{q*1024} sc1")
            loads.append(f"buffer_load_dwordx4 v[{o+4}:{o+7}], v8, s[36:39], s78 offen offset:{q*1024} sc1")
            regs = list(range(o, o + 8))
            groups.append((regs, "s[64:65]") if q == 3 else regs)
        self.poll(loads, groups, 160, sleep=8)
        for t in range(7):
            A(f"v_cndmask_b32_e64 v{152+t}, 0, v{152+t}, s[64:65]")
        for t in range(7):
            A(f"v_add_f32 v{128+t}, v{128+t}, v{136+t}")
            A(f"v_add_f32 v{144+t}, v{144+t}, v{152+t}")
        for t in range(7):
            A(f"v_add_f32 v{128+t}, v{128+t}, v{144+t}")
        self.reduce7(list(range(128, 135)), 135)
        self.round_bf16(128)
        A("v_mul_f32 v15, v15, v128")
        self.round_bf16(15)
        A("s_lshl_b32 s69, s68, 12")
        A(f"s_add_u32 s69, s69, {W_H2:#x}")
        A("v_add_u32 v8, s69, v2")
        self.srd(48, "s24", "s25", 1792)
        A("s_lshr_b32 s69, s67, 4")
        A("s_mul_i32 s69, s69, 112")
        A("s_and_b32 s71, s67, 15")
        A("s_add_u32 s69, s69, s71")
        A("s_lshl_b32 s69, s69, 1")
        A("s_mul_i32 s71, s56, 896")
        A("s_add_u32 s69, s69, s71")
        A("v_lshrrev_b32 v9, 3, v0")
        A("v_lshlrev_b32 v9, 5, v9")
        A("v_add_u32 v9, s69, v9")
        self.stamp(5)
        A("s_waitcnt lgkmcnt(0)")
        A("s_barrier")
        loads = []
        for q in range(2):
            o = 128 + 8 * q
            loads.append(f"buffer_load_dwordx4 v[{o}:{o+3}], v8, s[36:39], 0 offen offset:{q*1024} sc1")
            loads.append(f"buffer_load_dwordx4 v[{o+4}:{o+7}], v8, s[36:39], 0 offen offset:{2048+q*1024} sc1")
        if p["b4"]:
            A("s_barrier")
        self.tstamp(3)
        self.poll(loads, [list(range(128, 136)), list(range(136, 144))], 160, sleep=p["h2sleep"], masked=True)
        self.stamp(6)
        self.tstamp(5)
        for t in range(7):
            A(f"v_add_f32 v{128+t}, v{128+t}, v{136+t}")
        self.reduce7(list(range(128, 135)), 135)
        self.round_bf16(128)
        A("v_mul_f32 v128, v14, v128")
        self.round_bf16(128)
        A("v_add_f32 v128, v128, v15")
        A("v_cvt_pk_bf16_f32 v128, v128, v128")
        A("s_mov_b32 s64, 0x01010101")
        A("s_mov_b32 s65, 0x00010101")
        A("s_mov_b64 exec, s[64:65]")
        A("buffer_store_short v128, v9, s[48:51], 0 offen")
        A("s_cmp_lg_u32 s68, 0")
        A("s_cbranch_scc1 L_hend")
        A("s_mov_b64 exec, 1")
        A("v_mov_b32 v130, s76")
        A("v_mov_b32 v131, 0")
        A("buffer_store_dword v130, v131, s[36:39], 0 offen sc1")
        A("s_branch L_hend")
        self.lab("L_notcons")
        A("s_waitcnt lgkmcnt(0)")
        A("s_barrier")
        self.lab("L_hend")
        self.write_stamps()


if __name__ == "__main__":
    import json
    out = sys.argv[1]
    kw = json.loads(sys.argv[2]) if len(sys.argv) > 2 else {}
    open(out, "w").write(G(**kw).gen())
```

```python
import sys, math, struct

KNAME = "gated_mix__gqa_block_cached__glu_gated_swiglu__decode_kernel"

HEADER = """; Kernarg layout for this problem (104 bytes, ptrs only, base s[0:1]):
"""

L_SC = 0x0000
L_Q = 0x4000
L_TAG = 0x4400
L_F = 0x4420
L_ST = 0x4480
L_LV = 0x4404
L_X = 0x4800
L_PART = 0x5000
L_WQ = 0x7000
L_W1 = 0xA800
L_W3 = 0xC400
L_W2 = 0xE000
L_WO = 0x10000
LDS_BYTES = 0x17000

W_EPOCH = 0
W_Q = 0x1000
W_ST = 0x10000
W_H1 = 0x100000
W_H2 = 0x200000
W_BP = 0x300000
W_FP = 0x80000
WS_USED = 0x400000

def f2u(f):
    return struct.unpack("<I", struct.pack("<f", f))[0]

LOG2E = 1.4426950408889634

class G:
    def __init__(self, **p):
        self.L = []
        self.p = dict(pace=10, stamps=False, round_scores=True, spin=0x40000, kflags="nt", vflags="nt",
                      mapping="x128", b0=True, wflags="", qflags="", abl="", cpref=True, fflags=None, dbgtime=False, hst=False, fpace=2, wo_late=True, caps=(6,), vcaps=None, tst=False, h1sleep=2, h2sleep=2, b4=True, tlb=False, eit=0, ecap=12, fb=None, prof=False)
        self.p.update(p)
        self.nlab = 0
        self.nstamp = 0

    def A(self, s):
        self.L.append("    " + s)

    def lab(self, name):
        self.L.append(name + ":")

    def newlab(self, base):
        self.nlab += 1
        return f"L_{base}{self.nlab}"

    def nop(self, n):
        if n > 0:
            self.A(f"s_nop {n-1}")

    def hstamp(self, k):
        if self.p["hst"]:
            self.A(f"s_memrealtime s[{80+2*k}:{81+2*k}]")

    def stamp(self, k):
        if (self.p["hst"] or self.p["tst"]) and k not in (0, 7):
            return
        if self.p["stamps"] or self.p["dbgtime"]:
            self.A(f"s_memrealtime s[{80+2*k}:{81+2*k}]")

    def write_stamps(self):
        A = self.A
        if self.p["dbgtime"]:
            self.stamp(7)
            A("s_mov_b64 exec, 1")
            A("s_waitcnt vmcnt(0) lgkmcnt(0)")
            A("s_not_b32 s80, s80")
            A("s_cmp_eq_u32 s3, 4")
            A("s_cselect_b32 s68, 32, 0")
            A("v_mov_b32 v12, s68")
            for k in range(8):
                A(f"v_mov_b32 v13, s{80+2*k}")
                A(f"global_atomic_umax v12, v13, s[26:27] offset:{4*k}")
            return
        if not self.p["stamps"]:
            return
        self.stamp(7)
        A("s_mov_b64 exec, -1")
        A("s_mul_i32 s68, s2, 5")
        A("s_add_u32 s68, s68, s3")
        A("s_lshl_b32 s69, s68, 4")
        A("s_add_u32 s69, s69, 0x20000000")
        A("s_lshl_b32 s68, s68, 7")
        A("s_add_u32 s68, s68, 0x21000000")
        A("s_waitcnt vmcnt(0) lgkmcnt(0)")
        if self.p["prof"]:
            A("s_sub_u32 s71, s69, 0x20000000")
            A("s_lshl_b32 s71, s71, 4")
            A("s_add_u32 s71, s71, 0x22000000")
            A("v_lshlrev_b32 v12, 2, v0")
            A("v_add_u32 v12, s71, v12")
            A("global_store_dword v12, v61, s[28:29]")
            A("s_waitcnt vmcnt(0)")
        A("v_mov_b32 v12, s69")
        A("v_mov_b32 v13, s68")
        for i in range(16):
            A(f"v_mov_b32 v{16+i}, s{80+i}")
        A("v_mov_b32 v32, s80"); A("v_mov_b32 v33, s81"); A("v_mov_b32 v34, s94"); A("v_mov_b32 v35, s95")
        A("s_mov_b64 exec, 1")
        A("global_store_dwordx4 v12, v[32:35], s[28:29]")
        for i in range(4):
            A(f"global_store_dwordx4 v13, v[{16+4*i}:{19+4*i}], s[28:29] offset:{16*i}")
        A("s_waitcnt vmcnt(0)")

    def row_allreduce(self, op, regs, steps=(8, 4, 2, 1)):
        A = self.A
        self.nop(2)
        for st in steps:
            for r in regs:
                A(f"{op}_dpp v{r}, v{r}, v{r} row_ror:{st} row_mask:0xf bank_mask:0xf")
            if len(regs) < 3:
                self.nop(3 - len(regs))

    def swap_allreduce(self, op, regs, tmps, which):
        A = self.A
        for r, t in zip(regs, tmps):
            A(f"v_mov_b32 v{t}, v{r}")
        self.nop(2)
        for r, t in zip(regs, tmps):
            A(f"v_permlane{which}_swap_b32 v{r}, v{t}")
        self.nop(1)
        for r, t in zip(regs, tmps):
            A(f"{op} v{r}, v{r}, v{t}")

    def round_bf16(self, r, t=None):
        A = self.A
        A(f"v_cvt_pk_bf16_f32 v{r}, v{r}, v{r}")
        A(f"v_and_b32 v{r}, s62, v{r}")

    def reduce7(self, v, z):
        A = self.A
        A(f"v_mov_b32 v{z}, 0")
        w = list(v) + [z]
        self.nop(2)
        for i in range(4):
            A(f"v_permlane32_swap_b32 v{w[i]}, v{w[i+4]}")
        self.nop(1)
        for i in range(4):
            A(f"v_add_f32 v{w[i]}, v{w[i]}, v{w[i+4]}")
        self.nop(2)
        for i in range(2):
            A(f"v_permlane16_swap_b32 v{w[i]}, v{w[i+2]}")
        self.nop(1)
        for i in range(2):
            A(f"v_add_f32 v{w[i]}, v{w[i]}, v{w[i+2]}")
        self.nop(2)
        A(f"v_add_f32_dpp v{w[0]}, v{w[0]}, v{w[0]} row_ror:8 row_mask:0xf bank_mask:0x3")
        A(f"v_add_f32_dpp v{w[0]}, v{w[1]}, v{w[1]} row_ror:8 row_mask:0xf bank_mask:0xc")
        self.nop(2)
        A(f"v_add_f32_dpp v{w[0]}, v{w[0]}, v{w[0]} row_half_mirror row_mask:0xf bank_mask:0xf")
        self.nop(2)
        A(f"v_add_f32_dpp v{w[0]}, v{w[0]}, v{w[0]} quad_perm:[1,0,3,2] row_mask:0xf bank_mask:0xf")
        self.nop(2)
        A(f"v_add_f32_dpp v{w[0]}, v{w[0]}, v{w[0]} quad_perm:[2,3,0,1] row_mask:0xf bank_mask:0xf")

    def srd(self, d, lo, hi, nbytes):
        A = self.A
        A(f"s_mov_b32 s{d}, {lo}")
        A(f"s_mov_b32 s{d+1}, {hi}")
        A(f"s_mov_b32 s{d+2}, {nbytes:#x}")
        A(f"s_mov_b32 s{d+3}, 0x00020000")

    def poll(self, loads, groups, tmp, sleep=0, masked=False):
        A = self.A
        lp = self.newlab("poll")
        done = self.newlab("pdone")
        A(f"s_mov_b32 s70, {self.p['spin']:#x}")
        self.lab(lp)
        for l in loads:
            A(l)
        A("s_waitcnt vmcnt(0)")
        first = True
        for gi, g in enumerate(groups):
            mask = None
            if isinstance(g, tuple):
                g, mask = g
            regs = list(g)
            t = tmp + gi
            if len(regs) == 3:
                A(f"v_bitop3_b32 v{t}, v{regs[0]}, v{regs[1]}, v{regs[2]} bitop3:0x96")
            else:
                A(f"v_bitop3_b32 v{t}, v{regs[0]}, v{regs[1]}, v{regs[2]} bitop3:0x96")
                rest = regs[3:]
                while len(rest) >= 2:
                    A(f"v_bitop3_b32 v{t}, v{t}, v{rest[0]}, v{rest[1]} bitop3:0x96")
                    rest = rest[2:]
                if rest:
                    A(f"v_xor_b32 v{t}, v{t}, v{rest[0]}")
            dst = "s[72:73]" if first else "s[74:75]"
            A(f"v_cmp_ne_u32_e64 {dst}, s58, v{t}")
            if mask is not None:
                A(f"s_and_b64 {dst}, {dst}, {mask}")
            if not first:
                A("s_or_b64 s[72:73], s[72:73], s[74:75]")
            first = False
        A("s_cmp_eq_u64 s[72:73], 0")
        A(f"s_cbranch_scc1 {done}")
        if masked:
            A("s_mov_b64 exec, s[72:73]")
        if sleep:
            A(f"s_sleep {sleep}")
        A("s_sub_u32 s70, s70, 1")
        A("s_cmp_lg_u32 s70, 0")
        A(f"s_cbranch_scc1 {lp}")
        self.lab(done)
        if masked:
            A("s_mov_b64 exec, -1")

    def gen(self):
        A = self.A
        p = self.p
        L = self.L
        L.append(HEADER + f"; @launch grid=(256,1,1) block=(320,1,1) lds={LDS_BYTES}")
        L.append('.amdgcn_target "amdgcn-amd-amdhsa--gfx950"')
        L.append(".text")
        L.append(f".globl {KNAME}")
        L.append(".p2align 8")
        L.append(f".type {KNAME},@function")
        self.lab(KNAME)
        A("s_cmp_ge_u32 s2, 256")
        A("s_cbranch_scc1 L_end")
        A("s_load_dwordx16 s[4:19], s[0:1], 0")
        A("s_load_dwordx8 s[20:27], s[0:1], 64")
        A("s_load_dwordx2 s[28:29], s[0:1], 96")
        if p["dbgtime"]:
            for k in range(1, 8):
                A(f"s_mov_b32 s{80+2*k}, 0")
        self.stamp(0)
        A("v_lshrrev_b32 v1, 6, v0")
        A("v_and_b32 v0, 63, v0")
        A("v_readfirstlane_b32 s3, v1")
        if p["mapping"] == "x128":
            A("s_and_b32 s52, s2, 127")
            A("s_lshr_b32 s53, s2, 7")
        elif p["mapping"] == "x128b":
            A("s_and_b32 s52, s2, 7")
            A("s_lshl_b32 s52, s52, 4")
            A("s_bfe_u32 s53, s2, 0x40003")
            A("s_add_u32 s52, s52, s53")
            A("s_lshr_b32 s53, s2, 7")
        A("s_lshr_b32 s54, s52, 3")
        A("s_and_b32 s55, s52, 7")
        A("s_lshl_b32 s55, s55, 1")
        A("s_add_u32 s55, s55, s53")
        A("s_lshr_b32 s56, s54, 3")
        A("s_and_b32 s57, s54, 7")
        A("s_mov_b32 s62, 0xffff0000")
        A("s_cmp_lg_u32 s3, 4")
        A("s_cbranch_scc1 L_stream")
        self.helper()
        A("s_endpgm")
        self.lab("L_stream")
        self.stream()
        self.lab("L_end")
        A("s_endpgm")
        L.append('.section .rodata,"a"')
        L.append(".p2align 6")
        L.append(f".amdhsa_kernel {KNAME}")
        L.append("  .amdhsa_next_free_vgpr 256")
        L.append("  .amdhsa_next_free_sgpr 102")
        L.append("  .amdhsa_accum_offset 256")
        L.append("  .amdhsa_group_segment_fixed_size 0")
        L.append("  .amdhsa_kernarg_size 104")
        L.append("  .amdhsa_user_sgpr_count 2")
        L.append("  .amdhsa_user_sgpr_kernarg_segment_ptr 1")
        L.append("  .amdhsa_system_sgpr_workgroup_id_x 1")
        L.append("  .amdhsa_float_denorm_mode_32 3")
        L.append(".end_amdhsa_kernel")
        return "\n".join(L) + "\n"

    def ring(self, rp, s, j):
        return 128 + ((rp * 2 + s) * 4 + j) * 4

    def ldk(self, rp, s, j):
        r = self.ring(rp, s, j)
        sb = "s61" if s else "s60"
        self.A(f"buffer_load_dwordx4 v[{r}:{r+3}], v1, s[32:35], {sb} offen offset:{j*128} {self.p['kflags']}")

    def vring(self, rp, s, j):
        return 64 + ((rp * 2 + s) * 4 + j) * 4

    def ldv(self, rp, s, j, s0="s60", s1="s61"):
        r = self.vring(rp, s, j)
        sb = s1 if s else s0
        self.A(f"buffer_load_dwordx4 v[{r}:{r+3}], v2, s[40:43], {sb} offen offset:{j*1024} {self.p['vflags']}")

    def pace(self, caps, n):
        A = self.A
        fb = self.p["fb"]
        if not fb:
            A(f"s_waitcnt vmcnt({caps[n % len(caps)]-1})")
            return 1
        sk = self.newlab("sk")
        A(f"s_waitcnt vmcnt({fb['hi']-1})")
        A(f"s_bitcmp1_b32 s79, {n % 16}")
        A(f"s_cbranch_scc0 {sk}")
        A(f"s_waitcnt vmcnt({fb['lo']-1})")
        self.lab(sk)
        return 3

    def checkpoint(self, c):
        A = self.A
        fb = self.p["fb"]
        A("s_mov_b32 s78, 1")
        A(f"s_atomic_add s78, s[26:27], {(c & 1) * 128 + (c >> 1) * 4:#x} glc")
        A("s_waitcnt lgkmcnt(0)")
        A(f"s_mov_b32 s71, {fb['masks'][0]:#x}")
        for th, m in zip(fb["th"], fb["masks"][1:]):
            A(f"s_cmp_ge_u32 s78, {th}")
            A(f"s_cselect_b32 s71, {m:#x}, s71")
        A("v_mov_b32 v250, s71")
        A(f"v_mov_b32 v251, {L_LV:#x}")
        A("ds_write_b32 v251, v250")

    def prof(self):
        if self.p["prof"]:
            A = self.A
            A("s_memrealtime s[96:97]")
            A("s_waitcnt lgkmcnt(0)")
            A("v_writelane_b32 v61, s96, m0")
            A("s_add_u32 m0, m0, 1")

    def tstamp(self, k):
        if self.p["tst"]:
            self.A(f"s_memrealtime s[{80+2*k}:{81+2*k}]")

    def stream(self):
        A = self.A
        p = self.p
        caps = list(p["caps"])
        vcaps = list(p["vcaps"] or caps)
        cmax = max(caps)
        fb = p["fb"]
        A("v_and_b32 v12, 15, v0")
        A("v_lshrrev_b32 v13, 4, v0")
        A("v_lshrrev_b32 v14, 1, v12")
        A("v_lshlrev_b32 v1, 9, v14")
        A("v_and_b32 v15, 1, v12")
        A("v_lshl_or_b32 v1, v15, 6, v1")
        A("v_lshl_or_b32 v1, v13, 4, v1")
        A("s_lshl_b32 s66, s53, 2")
        A("s_add_u32 s66, s66, s3")
        A("s_lshl_b32 s66, s66, 13")
        A("s_lshl_b32 s67, s52, 21")
        A("s_mov_b32 s60, s66")
        A("s_mov_b32 s34, 0x200000")
        A("s_mov_b32 s35, 0x00020000")
        A("s_waitcnt lgkmcnt(0)")
        A("s_add_u32 s32, s6, s67")
        A("s_addc_u32 s33, s7, 0")
        self.hstamp(1)
        if p["b0"]:
            A("s_barrier")
        self.hstamp(2)
        n = 0
        for rp in range(4):
            A("s_add_u32 s61, s60, 4096")
            for s in range(2):
                for j in range(4):
                    if n == cmax:
                        self.hstamp(3)
                    if n >= cmax:
                        A(f"s_waitcnt vmcnt({caps[n % len(caps)]-1})")
                    if n == cmax:
                        self.hstamp(4)
                    if n == cmax + 9:
                        self.hstamp(5)
                    self.ldk(rp, s, j)
                    n += 1
                    if n == cmax:
                        self.stream_setup()
            A("s_add_u32 s60, s60, 0x10000")
        self.stamp(1)
        self.hstamp(6)
        if "b1" not in p["abl"]:
            A("s_barrier")
        for j in range(4):
            A(f"ds_read_b128 v[{16+4*j}:{19+4*j}], v12 offset:{j*128}")
        A(f"ds_read_b32 v13, v13")
        A("s_mov_b32 s59, 0")
        A("s_waitcnt lgkmcnt(0)")
        A("v_readfirstlane_b32 s58, v13")
        if fb:
            A(f"s_mov_b32 s79, {fb['init']:#x}")
            A(f"v_mov_b32 v63, {L_LV:#x}")
            cmax = fb["hi"]
        self.stamp(2)
        def kset(rp, s, mid):
            d = 32 + 4 * s
            for j in range(4):
                r = self.ring(rp, s, j)
                c = "0" if j == 0 else f"v[{d}:{d+3}]"
                A(f"v_mfma_f32_16x16x32_bf16 v[{d}:{d+3}], v[{16+4*j}:{19+4*j}], v[{r}:{r+3}], {c}")
            k = mid()
            self.nop(max(0, 8 - k))
            t = 40 + 2 * s
            A(f"v_add_f32_dpp v{t}, v{d+1}, v{d} quad_perm:[1,1,3,3] row_mask:0xf bank_mask:0xf")
            A(f"v_add_f32_dpp v{t+1}, v{d+3}, v{d+2} quad_perm:[1,1,3,3] row_mask:0xf bank_mask:0xf")
            if s == 1:
                A("s_mov_b64 exec, 0x5555")
                A(f"ds_write_b128 v4, v[40:43] offset:{rp*128}")
                A("s_mov_b64 exec, -1")
        if p["prof"]:
            A("s_mov_b32 m0, 0")
            A("v_mov_b32 v61, 0")
        self.lab("L_kloop")
        n = 0
        for rp in range(4):
            self.prof()
            A("s_add_u32 s61, s60, 4096")
            for s in range(2):
                def mid():
                    nonlocal n
                    for j in range(4):
                        self.pace(caps, n)
                        self.ldk(rp, s, j)
                        n += 1
                    if fb and rp == 2 and s == 0:
                        A("ds_read_b32 v62, v63")
                    return 8
                kset(rp, s, mid)
            A("s_add_u32 s60, s60, 0x10000")
        A("v_add_u32 v4, 512, v4")
        A("s_add_u32 s59, s59, 1")
        if fb:
            A("s_waitcnt lgkmcnt(0)")
            A("v_readfirstlane_b32 s79, v62")
            for kc in fb["kcp"]:
                sk = self.newlab("cb")
                A(f"s_cmp_lg_u32 s59, {kc}")
                A(f"s_cbranch_scc1 {sk}")
                A("s_barrier")
                self.lab(sk)
        A("s_cmp_lt_u32 s59, 7")
        A("s_cbranch_scc1 L_kloop")
        A("s_mov_b32 s60, s66")
        A("s_add_u32 s61, s60, 4096")
        A("s_add_u32 s68, s60, 0x10000")
        A("s_add_u32 s69, s60, 0x11000")
        vseq = [(rp, s, j) for rp in range(2) for s in range(2) for j in range(4)]
        nv = 0
        def vissue(paced):
            nonlocal nv
            rp, s, j = vseq[nv]
            if paced:
                A(f"s_waitcnt vmcnt({max(caps)-1})")
            if rp == 0:
                self.ldv(rp, s, j)
            else:
                self.ldv(rp, s, j, "s68", "s69")
            nv += 1
        assert cmax <= 8
        for rp in range(4):
            for s in range(2):
                idx = rp * 2 + s
                def mid():
                    if idx < 5:
                        vissue(True)
                        return 2
                    if idx == 5:
                        while nv < max(caps):
                            vissue(True)
                        A(f"s_waitcnt vmcnt({nv})")
                        while nv < 16:
                            vissue(False)
                        return 8
                    return 0
                kset(rp, s, mid)
        A("s_add_u32 s60, s60, 0x20000")
        self.stamp(3)
        S = 128
        A("s_waitcnt lgkmcnt(0)")
        for i in range(4):
            A(f"ds_read_b128 v[{S+4*i}:{S+4*i+3}], v14 offset:{i*1024}")
        A(f"s_mov_b32 s63, {f2u(LOG2E/16):#x}")
        A("s_waitcnt lgkmcnt(0)")
        if p["round_scores"]:
            for i in range(8):
                a, b = S + 2 * i, S + 2 * i + 1
                A(f"v_cvt_pk_bf16_f32 v{b}, v{a}, v{b}")
                A(f"v_lshlrev_b32 v{a}, 16, v{b}")
                A(f"v_and_b32 v{b}, s62, v{b}")
        m = [148, 150]
        T2 = [152, 153]
        for h in range(2):
            A(f"v_max3_f32 v{m[h]}, v{S+h}, v{S+2+h}, v{S+4+h}")
            A(f"v_max3_f32 v{m[h]}, v{m[h]}, v{S+6+h}, v{S+8+h}")
            A(f"v_max3_f32 v{m[h]}, v{m[h]}, v{S+10+h}, v{S+12+h}")
            A(f"v_max_f32 v{m[h]}, v{m[h]}, v{S+14+h}")
        self.row_allreduce("v_max_f32", m)
        self.swap_allreduce("v_max_f32", m, T2, 16)
        self.swap_allreduce("v_max_f32", m, T2, 32)
        for h in range(2):
            A(f"v_mul_f32 v{m[h]}, s63, v{m[h]}")
        for i in range(16):
            A(f"v_fma_f32 v{S+i}, v{S+i}, s63, -v{m[i&1]}")
        for i in range(16):
            A(f"v_exp_f32 v{S+i}, v{S+i}")
        l = [149, 151]
        self.nop(1)
        for i in range(4):
            A(f"ds_write_b128 v14, v[{S+4*i}:{S+4*i+3}] offset:{i*1024}")
        for h in range(2):
            A(f"v_add_f32 v{l[h]}, v{S+h}, v{S+2+h}")
            for i in range(2, 8):
                A(f"v_add_f32 v{l[h]}, v{l[h]}, v{S+2*i+h}")
        A("s_waitcnt lgkmcnt(0)")
        PB = 160
        for j in range(4):
            A(f"ds_read_b128 v[{PB+4*j}:{PB+4*j+3}], v5 offset:{j*32}")
        self.row_allreduce("v_add_f32", l)
        self.swap_allreduce("v_add_f32", l, T2, 16)
        self.swap_allreduce("v_add_f32", l, T2, 32)
        A("s_mov_b64 exec, 1")
        A("ds_write_b128 v15, v[148:151]")
        A("s_mov_b64 exec, -1")
        AC = 16
        for i in range(16):
            A(f"v_mov_b32 v{AC+i}, 0")
        A("s_mov_b32 s59, 0")
        A("s_waitcnt lgkmcnt(0)")
        if "b2" not in p["abl"]:
            A("s_barrier")
        A("s_waitcnt vmcnt(15)")
        self.stamp(4)
        def vbody(last, vcaps=vcaps):
            n = 0
            for rp in range(2):
                P = PB + 16 * rp
                Pn = PB + 16 * (1 - rp)
                self.prof()
                if not last:
                    A("s_add_u32 s61, s60, 4096")
                A("s_waitcnt lgkmcnt(0)")
                if not (last and rp == 1):
                    for j in range(4):
                        A(f"ds_read_b128 v[{Pn+4*j}:{Pn+4*j+3}], v5 offset:{(rp+1)*128 + j*32}")
                    if fb and not last and rp == 0:
                        A("ds_read_b32 v62, v63")
                    if fb and not last and rp == 1:
                        A("v_readfirstlane_b32 s79, v62")
                for s in range(2):
                    for j in range(4):
                        r = self.vring(rp, s, j)
                        if last and 15 - n < (fb["hi"] if fb else max(vcaps)):
                            A(f"s_waitcnt vmcnt({15 - n})")
                        for d in range(4):
                            A(f"v_lshlrev_b32 v{52+2*d}, 16, v{r+d}")
                            A(f"v_and_b32 v{53+2*d}, s62, v{r+d}")
                        pp = P + 4 * j + 2 * s
                        for h in range(2):
                            for d in range(4):
                                a = AC + h * 8 + 2 * d
                                A(f"v_pk_fma_f32 v[{a}:{a+1}], v[{52+2*d}:{53+2*d}], v[{pp}:{pp+1}], v[{a}:{a+1}] op_sel:[0,{h},0] op_sel_hi:[1,{h},1]")
                        if not last:
                            self.pace(vcaps, n)
                            self.ldv(rp, s, j)
                        n += 1
                if not last:
                    A("s_add_u32 s60, s60, 0x10000")
        self.lab("L_vloop")
        vbody(False)
        A("v_add_u32 v5, 256, v5")
        A("s_add_u32 s59, s59, 1")
        if fb:
            for vc in fb["vcp"]:
                sk = self.newlab("cb")
                A(f"s_cmp_lg_u32 s59, {vc}")
                A(f"s_cbranch_scc1 {sk}")
                A("s_barrier")
                self.lab(sk)
        A(f"s_cmp_lt_u32 s59, {15 - p['eit']}")
        A("s_cbranch_scc1 L_vloop")
        if p["eit"]:
            self.lab("L_vloop2")
            vbody(False, [p["ecap"]])
            A("v_add_u32 v5, 256, v5")
            A("s_add_u32 s59, s59, 1")
            A("s_cmp_lt_u32 s59, 15")
            A("s_cbranch_scc1 L_vloop2")
            vbody(True, [p["ecap"]])
        else:
            vbody(True)
        self.stamp(5)
        self.tstamp(1)
        self.nop(2)
        for e in range(8):
            A(f"v_permlane32_swap_b32 v{AC+e}, v{AC+8+e}")
        for e in range(8):
            A(f"v_add_f32 v{AC+e}, v{AC+e}, v{AC+8+e}")
        A(f"ds_write_b128 v9, v[{AC}:{AC+3}]")
        A(f"ds_write_b128 v9, v[{AC+4}:{AC+7}] offset:16")
        A("s_waitcnt lgkmcnt(0)")
        self.tstamp(2)
        A("s_barrier")
        self.tstamp(3)
        for w in range(4):
            A(f"ds_read_b64 v[{80+2*w}:{81+2*w}], v10 offset:{w*2048}")
        A("ds_read_b128 v[88:91], v60")
        def wot(t):
            A(f"ds_read_b64_tr_b16 v[{128+4*t}:{129+4*t}], v11 offset:{t*32}")
            A(f"ds_read_b64_tr_b16 v[{130+4*t}:{131+4*t}], v11 offset:{t*32+4*896}")
        A("s_waitcnt lgkmcnt(0)")
        A("v_pk_mul_f32 v[92:93], v[80:81], v[88:89] op_sel:[0,0] op_sel_hi:[1,0]")
        A("v_pk_fma_f32 v[92:93], v[82:83], v[88:89], v[92:93] op_sel:[0,1,0] op_sel_hi:[1,1,1]")
        A("v_pk_fma_f32 v[92:93], v[84:85], v[90:91], v[92:93] op_sel:[0,0,0] op_sel_hi:[1,0,1]")
        A("v_pk_fma_f32 v[92:93], v[86:87], v[90:91], v[92:93] op_sel:[0,1,0] op_sel_hi:[1,1,1]")
        A("v_bitop3_b32 v94, v92, v93, s58 bitop3:0x96")
        A("v_mov_b32 v95, v94")
        A("buffer_store_dwordx4 v[92:95], v6, s[36:39], 0 offen sc1")
        self.tstamp(4)
        for t in range(7):
            wot(t)
        X = 96
        loads = [f"buffer_load_dwordx4 v[{X+4*i}:{X+4*i+3}], v7, s[36:39], 0 offen offset:{i*64} sc1" for i in range(4)]
        self.poll(loads, [[X + 4 * i, X + 4 * i + 1, X + 4 * i + 2] for i in range(4)], 112, sleep=p["h1sleep"], masked=True)
        self.stamp(6)
        self.tstamp(5)
        vals = [X + 4 * i + k for i in range(4) for k in range(2)]
        self.row_allreduce("v_add_f32", vals)
        for i in range(4):
            A(f"v_cvt_pk_bf16_f32 v{116+i}, v{X+4*i}, v{X+4*i+1}")
        A("s_waitcnt lgkmcnt(0)")
        self.nop(1)
        for t in range(7):
            A(f"v_mfma_f32_16x16x32_bf16 v[{160+4*t}:{163+4*t}], v[116:119], v[{128+4*t}:{131+4*t}], 0")
        D = [160 + 4 * t for t in range(7)]
        self.nop(8)
        A(f"v_bitop3_b32 v123, v{D[0]}, v{D[1]}, s58 bitop3:0x96")
        A(f"v_bitop3_b32 v123, v123, v{D[2]}, v{D[3]} bitop3:0x96")
        A(f"v_bitop3_b32 v123, v123, v{D[4]}, v{D[5]} bitop3:0x96")
        A(f"v_xor_b32 v123, v123, v{D[6]}")
        for i in range(3):
            A(f"v_cndmask_b32_e64 v{120+i}, v{D[i]}, v{D[4+i]}, s[64:65]")
        A(f"v_cndmask_b32_e64 v123, v{D[3]}, v123, s[64:65]")
        A("s_mov_b32 exec_hi, 0")
        A("buffer_store_dwordx4 v[120:123], v8, s[36:39], 0 offen sc1")
        self.tstamp(6)
        if p["b4"] and p["stamps"]:
            A("s_barrier")
        self.write_stamps()
        A("s_endpgm")

    def stream_setup(self):
        A = self.A
        self.srd(36, "s28", "s29", WS_USED)
        A("s_mov_b32 s64, 0xffff0000")
        A("s_mov_b32 s65, 0")
        A("s_lshl_b32 s68, s3, 12")
        A("v_lshlrev_b32 v4, 4, v14")
        A("v_add_u32 v4, s68, v4")
        A("v_lshlrev_b32 v2, 4, v0")
        A("v_lshrrev_b32 v61, 5, v0")
        A("v_lshlrev_b32 v5, 4, v61")
        A("v_add_u32 v5, s68, v5")
        A("s_add_u32 s40, s8, s67")
        A("s_addc_u32 s41, s9, 0")
        A("s_mov_b32 s42, 0x200000")
        A("s_mov_b32 s43, 0x00020000")
        A("s_lshl_b32 s69, s3, 11")
        A(f"s_add_u32 s69, s69, {L_PART}")
        A("v_lshlrev_b32 v9, 5, v0")
        A("v_add_u32 v9, s69, v9")
        A("s_lshl_b32 s69, s3, 9")
        A(f"s_add_u32 s69, s69, {L_PART}")
        A("v_lshlrev_b32 v10, 3, v0")
        A("v_add_u32 v10, s69, v10")
        A("s_lshr_b32 s69, s3, 1")
        A("s_lshl_b32 s69, s69, 4")
        A(f"s_add_u32 s69, s69, {L_F}")
        A("v_mov_b32 v60, s69")
        A("s_lshl_b32 s69, s54, 4")
        A("s_lshl_b32 s71, s3, 2")
        A("s_add_u32 s69, s69, s71")
        A("s_lshl_b32 s69, s69, 12")
        A("s_lshl_b32 s71, s55, 8")
        A("s_add_u32 s69, s69, s71")
        A(f"s_add_u32 s69, s69, {W_H1:#x}")
        A("v_lshlrev_b32 v6, 12, v13")
        A("v_and_b32 v63, 3, v0")
        A("v_lshl_or_b32 v6, v63, 6, v6")
        A("v_bfe_u32 v63, v0, 2, 2")
        A("v_lshl_or_b32 v6, v63, 4, v6")
        A("v_add_u32 v6, s69, v6")
        A("s_lshl_b32 s69, s54, 4")
        A("s_add_u32 s69, s69, s55")
        A("s_lshl_b32 s69, s69, 12")
        A(f"s_add_u32 s69, s69, {W_H1:#x}")
        A("v_lshlrev_b32 v7, 8, v12")
        A("v_lshl_or_b32 v7, v13, 4, v7")
        A("v_add_u32 v7, s69, v7")
        A("s_lshl_b32 s69, s54, 4")
        A("s_add_u32 s69, s69, s55")
        A("s_lshl_b32 s69, s69, 11")
        A("s_lshl_b32 s71, s3, 9")
        A("s_add_u32 s69, s69, s71")
        A(f"s_add_u32 s69, s69, {W_H2:#x}")
        A("v_add_u32 v8, s69, v2")
        A("v_lshrrev_b32 v63, 2, v12")
        A("v_lshl_add_u32 v63, v13, 3, v63")
        A("v_mul_u32_u24 v11, 896, v63")
        A("v_and_b32 v63, 3, v12")
        A("v_lshl_add_u32 v11, v63, 3, v11")
        A("s_mul_i32 s69, s3, 224")
        A(f"s_add_u32 s69, s69, {L_WO:#x}")
        A("v_add_u32 v11, s69, v11")
        A("v_and_b32 v63, 1, v14")
        A("v_lshlrev_b32 v12, 9, v63")
        A("v_lshl_or_b32 v12, v15, 6, v12")
        A("v_lshl_or_b32 v12, v13, 4, v12")
        A(f"v_add_u32 v12, {L_Q:#x}, v12")
        A(f"v_mov_b32 v13, {L_TAG:#x}")
        A("v_lshlrev_b32 v14, 4, v0")
        A("v_add_u32 v14, s68, v14")
        A("s_lshl_b32 s69, s3, 4")
        A(f"s_add_u32 s69, s69, {L_ST:#x}")
        A("v_mov_b32 v15, s69")

    def dma(self, vaddr, srd, soff, ldsaddr, fl=None):
        if fl is None:
            fl = self.p["wflags"]
            if "w" in self.p["abl"]:
                return
            if "f" in self.p["abl"] and vaddr == 1:
                return
            if "o" in self.p["abl"] and vaddr == 2:
                return
        A = self.A
        A(f"s_mov_b32 m0, {ldsaddr:#x}")
        if isinstance(soff, int):
            if soff == 0:
                so = "0"
                self.nop(1)
            else:
                A(f"s_mov_b32 s71, {soff:#x}")
                so = "s71"
        else:
            so = soff
            self.nop(1)
        A(f"buffer_load_dwordx4 v{vaddr}, s[{srd}:{srd+3}], {so} offen {fl} lds")

    def helper(self):
        A = self.A
        p = self.p
        A("s_setprio 3")
        A("v_and_b32 v12, 15, v0")
        A("v_lshrrev_b32 v13, 4, v0")
        A("s_and_b32 s66, s2, 7")
        A("s_lshr_b32 s67, s2, 5")
        A("s_lshl_b32 s67, s67, 3")
        A("s_or_b32 s66, s66, s67")
        A("s_lshl_b32 s66, s66, 2")
        A("s_bfe_u32 s67, s2, 0x20003")
        A("s_add_u32 s66, s66, s67")
        A("v_lshrrev_b32 v1, 1, v0")
        A("v_lshlrev_b32 v1, 13, v1")
        A("v_and_b32 v2, 1, v0")
        A("v_lshl_or_b32 v1, v2, 4, v1")
        A("s_lshl_b32 s67, s66, 5")
        A("v_add_u32 v1, s67, v1")
        A("v_lshlrev_b32 v2, 4, v0")
        A("s_waitcnt lgkmcnt(0)")
        self.hstamp(1)
        A("s_load_dword s58, s[28:29], 0")
        self.srd(40, "s10", "s11", 448 * 8192)
        self.srd(44, "s4", "s5", 1792)
        for i in range(0 if "Q" in p["abl"] else 14):
            self.dma(1, 40, i * 0x40000, L_WQ + i * 1024, p["qflags"])
        self.dma(2, 44, 0, L_X, "")
        self.dma(2, 44, 1024, L_X + 1024, "")
        if p["cpref"]:
            A("s_getpc_b64 s[30:31]")
            self.lab("L_pc")
            A("s_lshr_b32 s71, s2, 3")
            A("s_lshl_b32 s71, s71, 10")
            A("s_min_u32 s71, s71, L_end-L_pc-1020")
            A("v_add_u32 v11, s71, v2")
            A("global_load_dwordx4 v[248:251], v11, s[30:31]")
        self.hstamp(2)
        if p["b0"]:
            A("s_barrier")
        if p["tlb"]:
            A("v_mov_b32 v252, s28")
            A("v_mov_b32 v253, s29")
            A("s_lshl_b32 s71, s52, 21")
            A("s_add_u32 s68, s8, s71")
            A("s_addc_u32 s69, s9, 0")
            ents = [("s68", "s69"), ("s16", "s17"), ("s18", "s19"), ("s20", "s21"), ("s22", "s23"), ("s24", "s25")]
            for i, (lo, hi) in enumerate(ents):
                A(f"v_writelane_b32 v252, {lo}, {i+1}")
                A(f"v_writelane_b32 v253, {hi}, {i+1}")
            A("s_lshl_b32 s71, s57, 4")
            A("s_add_u32 s71, s71, s55")
            A("s_mul_i32 s71, s71, 28672")
            A("s_add_u32 s68, s12, s71")
            A("s_addc_u32 s69, s13, 0")
            A("v_writelane_b32 v252, s68, 7")
            A("v_writelane_b32 v253, s69, 7")
            A("s_add_u32 s68, s68, 28668")
            A("s_addc_u32 s69, s69, 0")
            A("v_writelane_b32 v252, s68, 8")
            A("v_writelane_b32 v253, s69, 8")
            A("s_add_u32 s68, s28, 0x200000")
            A("s_addc_u32 s69, s29, 0")
            A("v_writelane_b32 v252, s68, 9")
            A("v_writelane_b32 v253, s69, 9")
            A("global_load_dword v254, v[252:253], off nt")
        self.srd(36, "s28", "s29", WS_USED)
        A("v_lshrrev_b32 v5, 2, v12")
        A("v_lshl_add_u32 v5, v13, 3, v5")
        A("v_and_b32 v6, 3, v12")
        A("v_lshlrev_b32 v3, 5, v5")
        A("v_lshl_or_b32 v3, v6, 3, v3")
        A(f"v_add_u32 v3, {L_WQ:#x}, v3")
        A("v_and_b32 v7, 1, v12")
        A("v_mul_u32_u24 v4, 896, v7")
        A("v_lshl_add_u32 v4, v13, 4, v4")
        A(f"v_add_u32 v4, {L_X:#x}, v4")
        A("v_lshlrev_b32 v8, 6, v7")
        A("v_lshl_or_b32 v8, v13, 4, v8")
        A("s_lshl_b32 s67, s66, 7")
        A(f"s_add_u32 s67, s67, {W_Q:#x}")
        A("v_add_u32 v8, s67, v8")
        A("s_lshl_b32 s67, s57, 12")
        A("s_lshl_b32 s71, s56, 6")
        A("s_add_u32 s67, s67, s71")
        A(f"s_add_u32 s67, s67, {W_Q:#x}")
        A("v_lshrrev_b32 v9, 2, v0")
        A("v_lshlrev_b32 v9, 7, v9")
        A("v_lshl_add_u32 v9, v6, 4, v9")
        A("v_add_u32 v9, s67, v9")
        A("v_lshlrev_b32 v10, 3, v0")
        A(f"v_add_u32 v10, {L_Q:#x}, v10")
        A("s_waitcnt lgkmcnt(0)")
        A("s_add_u32 s76, s58, 2")
        A("s_or_b32 s76, s76, 1")
        A("s_mul_i32 s58, s76, 0x9E3779B1")
        self.hstamp(3)
        A(f"s_waitcnt vmcnt({int(bool(p['tlb'])) + int(bool(p['cpref']))})")
        self.hstamp(4)
        self.stamp(1)
        XB = 16
        WA = 72
        for s in range(14):
            A(f"ds_read_b128 v[{XB+4*s}:{XB+4*s+3}], v4 offset:{s*64}")
            A(f"ds_read_b64_tr_b16 v[{WA+4*s}:{WA+4*s+1}], v3 offset:{s*1024}")
            A(f"ds_read_b64_tr_b16 v[{WA+4*s+2}:{WA+4*s+3}], v3 offset:{s*1024+128}")
            if s >= 4:
                k = s - 4
                A("s_waitcnt lgkmcnt(12)")
                c = "0" if k == 0 else "v[128:131]"
                A(f"v_mfma_f32_16x16x32_bf16 v[128:131], v[{WA+4*k}:{WA+4*k+3}], v[{XB+4*k}:{XB+4*k+3}], {c}")
        for k in range(10, 14):
            A(f"s_waitcnt lgkmcnt({(13-k)*3})")
            A(f"v_mfma_f32_16x16x32_bf16 v[128:131], v[{WA+4*k}:{WA+4*k+3}], v[{XB+4*k}:{XB+4*k+3}], v[128:131]")
        self.nop(8)
        A("v_cvt_pk_bf16_f32 v132, v128, v129")
        A("v_cvt_pk_bf16_f32 v133, v130, v131")
        A("v_bitop3_b32 v134, v132, v133, s58 bitop3:0x96")
        A("v_mov_b32 v135, v134")
        A("s_mov_b32 s64, 0x00030003")
        A("s_mov_b32 s65, 0x00030003")
        A("s_mov_b64 exec, s[64:65]")
        A("buffer_store_dwordx4 v[132:135], v8, s[36:39], 0 offen sc1")
        A("s_mov_b64 exec, -1")
        self.stamp(2)
        self.hstamp(5)
        loads = [f"buffer_load_dwordx4 v[{136+4*i}:{139+4*i}], v9, s[36:39], 0 offen offset:{i*2048} sc1" for i in range(2)]
        if "q" not in p["abl"]:
            self.poll(loads, [[136, 137, 138], [140, 141, 142]], 144, masked=True)
        A("ds_write_b64 v10, v[136:137]")
        A("ds_write_b64 v10, v[140:141] offset:512")
        A("v_mov_b32 v144, s58")
        A(f"v_mov_b32 v145, {L_TAG:#x}")
        A("ds_write_b32 v145, v144")
        fb = p["fb"]
        if fb:
            A(f"v_mov_b32 v144, {fb['init']:#x}")
            A("ds_write_b32 v145, v144 offset:4")
        A("s_waitcnt lgkmcnt(0)")
        self.stamp(3)
        self.hstamp(6)
        if "b1" not in p["abl"]:
            A("s_barrier")
        A("s_lshl_b32 s67, s57, 4")
        A("s_add_u32 s67, s67, s55")
        def wo_dma():
            self.srd(40, "s12", "s13", 4096 * 896)
            A(f"s_mul_i32 s68, s67, 28672")
            for i in range(28):
                A(f"s_add_u32 s69, s68, {i*1024}")
                self.dma(2, 40, "s69", L_WO + i * 1024)
                if i % 4 == 3:
                    A("s_waitcnt vmcnt(4)")
        if not p["wo_late"]:
            wo_dma()
        A("s_and_b32 s68, s2, 7")
        A("s_lshr_b32 s69, s2, 6")
        A("s_lshl_b32 s69, s69, 3")
        A("s_add_u32 s68, s68, s69")
        A(f"s_cmp_ge_u32 s68, {0 if 'F' in p['abl'] else 28}")
        A("s_cbranch_scc1 L_noffn")
        A("s_lshl_b32 s68, s68, 3")
        A("s_bfe_u32 s69, s2, 0x30003")
        A("s_add_u32 s77, s68, s69")
        A("v_lshrrev_b32 v8, 3, v0")
        A("v_mul_u32_u24 v1, 3584, v8")
        A("v_and_b32 v8, 7, v0")
        A("v_lshl_add_u32 v1, v8, 4, v1")
        A("s_lshl_b32 s68, s68, 4")
        A(f"s_mul_i32 s71, s69, {56*3584}")
        A("s_add_u32 s68, s68, s71")
        A("v_add_u32 v1, s68, v1")
        A("s_mov_b32 s79, s69")
        self.srd(40, "s16", "s17", 448 * 3584)
        self.srd(44, "s18", "s19", 448 * 3584)
        for i in range(7):
            self.dma(1, 40, i * 8 * 3584, L_W1 + i * 1024, p["fflags"])
            self.dma(1, 44, i * 8 * 3584, L_W3 + i * 1024, p["fflags"])
            if p["fpace"] is not None:
                A(f"s_waitcnt vmcnt({p['fpace']})")
        self.srd(48, "s20", "s21", 1792 * 896)
        A("s_mul_i32 s68, s77, 7168")
        for i in range(7):
            A(f"s_add_u32 s69, s68, {i*1024}")
            self.dma(2, 48, "s69", L_W2 + i * 1024)
            if p["fpace"] is not None and i % 2 == 1:
                A(f"s_waitcnt vmcnt({p['fpace']})")
        A("s_mul_i32 s68, s79, 112")
        A("v_add_u32 v8, s68, v4")
        A("v_add_u32 v9, 64, v8")
        A("s_mov_b32 s64, 0")
        A("s_mov_b32 s65, 0xffff0000")
        A(f"v_mov_b32 v10, {L_X+1792:#x}")
        A("v_cndmask_b32_e64 v9, v9, v10, s[64:65]")
        A("ds_read_b128 v[16:19], v8")
        A("ds_read_b128 v[20:23], v9")
        A("v_lshlrev_b32 v3, 7, v5")
        A("v_lshl_add_u32 v3, v6, 3, v3")
        A(f"v_add_u32 v3, {L_W1:#x}, v3")
        A("v_add_u32 v11, 4096, v3")
        A("v_add_u32 v10, 3072, v3")
        A("v_cndmask_b32_e64 v11, v11, v10, s[64:65]")
        A("s_waitcnt lgkmcnt(0)")
        for t in range(8):
            m16 = 3 << (2 * t)
            A(f"s_mov_b32 s64, {m16 | (m16 << 16):#x}")
            A(f"s_mov_b32 s65, {m16 | (m16 << 16):#x}")
            for i in range(8):
                A(f"v_cndmask_b32_e64 v{24+8*t+i}, 0, v{16+i}, s[64:65]")
        A("s_waitcnt vmcnt(0)")
        WB = 144
        for half in range(2):
            for tt in range(4):
                t = half * 4 + tt
                o = half * 7168 + tt * 32
                r = WB + 8 * tt
                A(f"ds_read_b64_tr_b16 v[{r}:{r+1}], v3 offset:{o}")
                A(f"ds_read_b64_tr_b16 v[{r+2}:{r+3}], v3 offset:{o+512}")
                A(f"ds_read_b64_tr_b16 v[{r+4}:{r+5}], v11 offset:{o}")
                if tt == 3:
                    A("s_waitcnt lgkmcnt(0)")
                A(f"ds_read_b64_tr_b16 v[{r+6}:{r+7}], v11 offset:{o+512}")
            A("s_waitcnt lgkmcnt(0)")
            for tt in range(4):
                t = half * 4 + tt
                r = WB + 8 * tt
                for st in range(2):
                    c = "0" if (t == 0 and st == 0) else "v[128:131]"
                    A(f"v_mfma_f32_16x16x32_bf16 v[128:131], v[{r+4*st}:{r+4*st+3}], v[{24+8*t+4*st}:{27+8*t+4*st}], {c}")
            self.nop(8)
        A("s_lshl_b32 s68, s77, 11")
        A(f"s_add_u32 s68, s68, {W_FP:#x}")
        A("v_add_u32 v8, s68, v2")
        A("v_lshrrev_b32 v9, 1, v12")
        A("v_lshlrev_b32 v9, 11, v9")
        A("v_and_b32 v10, 1, v13")
        A("v_lshl_add_u32 v9, v10, 8, v9")
        A("v_lshrrev_b32 v10, 1, v13")
        A("v_lshl_add_u32 v9, v10, 7, v9")
        A("v_lshl_add_u32 v9, v7, 4, v9")
        A("s_and_b32 s68, s77, 0xf8")
        A("s_lshl_b32 s68, s68, 11")
        A("s_and_b32 s69, s79, 1")
        A("s_lshl_b32 s69, s69, 9")
        A("s_add_u32 s68, s68, s69")
        A("s_lshr_b32 s69, s79, 1")
        A("s_lshl_b32 s69, s69, 5")
        A("s_add_u32 s68, s68, s69")
        A(f"s_add_u32 s68, s68, {W_FP:#x}")
        A("v_add_u32 v9, s68, v9")
        A("v_mov_b32 v132, v130")
        A("v_mov_b32 v133, v131")
        A("v_bitop3_b32 v130, v128, v129, s58 bitop3:0x96")
        A("v_bitop3_b32 v134, v132, v133, s58 bitop3:0x96")
        A("v_mov_b32 v131, v130")
        A("v_mov_b32 v135, v134")
        A("buffer_store_dwordx4 v[128:131], v8, s[36:39], 0 offen sc1")
        A("buffer_store_dwordx4 v[132:135], v8, s[36:39], 0 offen offset:1024 sc1")
        loads = [f"buffer_load_dwordx4 v[{136+4*i}:{139+4*i}], v9, s[36:39], 0 offen offset:{i*1024} sc1" for i in range(2)]
        self.poll(loads, [[136, 137, 138], [140, 141, 142]], 144, sleep=8, masked=True)
        A("v_mov_b32 v128, v136")
        A("v_mov_b32 v129, v137")
        A("v_mov_b32 v130, v140")
        A("v_mov_b32 v131, v141")
        self.row_allreduce("v_add_f32", [128, 129, 130, 131], steps=(8, 4, 2))
        A("v_and_b32 v8, 1, v13")
        A("v_lshrrev_b32 v9, 2, v12")
        A("v_lshl_add_u32 v8, v8, 2, v9")
        A("v_mul_u32_u24 v3, 896, v8")
        A("v_lshl_add_u32 v3, v6, 3, v3")
        A(f"v_add_u32 v3, {L_W2:#x}, v3")
        for t in range(28):
            A(f"ds_read_b64_tr_b16 v[{144+2*t}:{145+2*t}], v3 offset:{t*32}")
            if t % 14 == 13:
                A("s_waitcnt lgkmcnt(0)")
        for i in range(4):
            self.round_bf16(128 + i)
        for i in range(4):
            A(f"v_mov_b32 v{132+i}, v{128+i}")
        self.nop(2)
        for i in range(4):
            A(f"v_permlane32_swap_b32 v{128+i}, v{132+i}")
        self.nop(1)
        for i in range(4):
            A(f"v_mul_f32 v{136+i}, {f2u(-LOG2E):#x}, v{128+i}")
        for i in range(4):
            A(f"v_exp_f32 v{136+i}, v{136+i}")
        self.nop(1)
        for i in range(4):
            A(f"v_add_f32 v{136+i}, 1.0, v{136+i}")
        for i in range(4):
            A(f"v_rcp_f32 v{136+i}, v{136+i}")
        self.nop(1)
        for i in range(4):
            A(f"v_mul_f32 v{128+i}, v{128+i}, v{136+i}")
        for i in range(4):
            self.round_bf16(128 + i)
        for i in range(4):
            A(f"v_mul_f32 v{128+i}, v{128+i}, v{132+i}")
        A("v_cvt_pk_bf16_f32 v128, v128, v129")
        A("v_cvt_pk_bf16_f32 v129, v130, v131")
        for u in range(4):
            m16 = 0xf << (4 * u)
            A(f"s_mov_b32 s64, {m16 | (m16 << 16):#x}")
            A("s_mov_b32 s65, 0")
            A(f"v_cndmask_b32_e64 v{132+2*u}, 0, v128, s[64:65]")
            A(f"v_cndmask_b32_e64 v{133+2*u}, 0, v129, s[64:65]")
        self.nop(2)
        DB = 200
        for u in range(4):
            for t in range(7):
                c = "0" if u == 0 else f"v[{DB+4*t}:{DB+4*t+3}]"
                tl = 7 * u + t
                A(f"v_mfma_f32_16x16x16_bf16 v[{DB+4*t}:{DB+4*t+3}], v[{132+2*u}:{133+2*u}], v[{144+2*tl}:{145+2*tl}], {c}")
        A("s_lshl_b32 s68, s77, 12")
        A(f"s_add_u32 s68, s68, {W_BP:#x}")
        A("v_add_u32 v8, s68, v2")
        self.nop(8)
        for b in range(2):
            o = 232 + 8 * b
            for t in range(7):
                A(f"v_mov_b32 v{o+t}, v{DB+4*t+b}")
            A(f"v_bitop3_b32 v{o+7}, v{o}, v{o+1}, s58 bitop3:0x96")
            A(f"v_bitop3_b32 v{o+7}, v{o+7}, v{o+2}, v{o+3} bitop3:0x96")
            A(f"v_bitop3_b32 v{o+7}, v{o+7}, v{o+4}, v{o+5} bitop3:0x96")
            A(f"v_xor_b32 v{o+7}, v{o+7}, v{o+6}")
            if "S" not in p["abl"]:
                A(f"buffer_store_dwordx4 v[{o}:{o+3}], v8, s[36:39], 0 offen offset:{b*2048} sc1")
                A(f"buffer_store_dwordx4 v[{o+4}:{o+7}], v8, s[36:39], 0 offen offset:{b*2048+1024} sc1")
        self.lab("L_noffn")
        self.srd(44, "s22", "s23", 896)
        A("buffer_load_dwordx4 v[128:131], v2, s[44:47], 0 offen")
        A("s_mul_i32 s68, s56, 896")
        A(f"s_add_u32 s68, s68, {L_X:#x}")
        A("v_add_u32 v8, s68, v2")
        A("ds_read_b128 v[132:135], v8")
        A("s_waitcnt vmcnt(0) lgkmcnt(0)")
        for d in range(4):
            A(f"v_lshlrev_b32 v136, 16, v{128+d}")
            A(f"v_and_b32 v137, s62, v{128+d}")
            A(f"v_lshlrev_b32 v138, 16, v{132+d}")
            A(f"v_and_b32 v139, s62, v{132+d}")
            A("v_mul_f32 v136, v136, v138")
            A("v_mul_f32 v137, v137, v139")
            A("v_cvt_pk_bf16_f32 v137, v136, v137")
            A("v_lshlrev_b32 v136, 16, v137")
            A("v_and_b32 v137, s62, v137")
            if d == 0:
                A("v_add_f32 v140, v136, v137")
            else:
                A("v_add_f32 v140, v140, v136")
                A("v_add_f32 v140, v140, v137")
        A("s_mov_b32 s64, -1")
        A("s_mov_b32 s65, 0x00ffffff")
        A("v_cndmask_b32_e64 v140, 0, v140, s[64:65]")
        self.row_allreduce("v_add_f32", [140])
        self.swap_allreduce("v_add_f32", [140], [141], 16)
        self.swap_allreduce("v_add_f32", [140], [141], 32)
        self.round_bf16(140)
        A(f"v_mul_f32 v140, {f2u(-LOG2E):#x}, v140")
        A("v_exp_f32 v140, v140")
        self.nop(1)
        A("v_add_f32 v140, 1.0, v140")
        A("v_rcp_f32 v14, v140")
        self.nop(1)
        self.round_bf16(14)
        A("v_sub_f32 v15, 1.0, v14")
        self.round_bf16(15)
        self.stamp(4)
        A("s_waitcnt vmcnt(0)")
        ncp = 0
        if fb:
            for kc in fb["kcp"]:
                A("s_barrier")
                self.checkpoint(ncp)
                ncp += 1
        if "b2" not in p["abl"]:
            A("s_barrier")
        if fb and fb["b2cp"]:
            self.checkpoint(ncp)
            ncp += 1
        A("v_lshlrev_b32 v8, 3, v7")
        A(f"v_add_u32 v8, {L_ST:#x}, v8")
        for w in range(4):
            A(f"ds_read_b64 v[{128+2*w}:{129+2*w}], v8 offset:{w*16}")
        A("s_lshl_b32 s68, s54, 11")
        A(f"s_add_u32 s68, s68, {W_ST:#x}")
        A("s_lshl_b32 s69, s55, 7")
        A("s_add_u32 s69, s69, s68")
        A("v_add_u32 v9, s69, v2")
        A("v_bfe_u32 v10, v0, 1, 4")
        A("v_lshlrev_b32 v10, 7, v10")
        A("v_lshl_add_u32 v10, v7, 4, v10")
        A("v_add_u32 v10, s68, v10")
        A("s_waitcnt lgkmcnt(0)")
        A("v_max3_f32 v136, v128, v130, v132")
        A("v_max_f32 v136, v136, v134")
        for w in range(4):
            A(f"v_sub_f32 v{140+w}, v{128+2*w}, v136")
        for w in range(4):
            A(f"v_exp_f32 v{140+w}, v{140+w}")
        self.nop(1)
        A("v_mul_f32 v137, v140, v129")
        for w in range(1, 4):
            A(f"v_fmac_f32 v137, v{140+w}, v{129+2*w}")
        A("v_bitop3_b32 v138, v136, v137, s58 bitop3:0x96")
        A("v_mov_b32 v139, v138")
        A("s_mov_b64 exec, 0xff")
        A("buffer_store_dwordx4 v[136:139], v9, s[36:39], 0 offen sc1")
        A("s_mov_b64 exec, -1")
        if p["wo_late"]:
            wo_dma()
        self.poll(["buffer_load_dwordx4 v[144:147], v10, s[36:39], 0 offen sc1"], [[144, 145, 146]], 148, sleep=16, masked=True)
        A("v_mov_b32 v148, v144")
        self.row_allreduce("v_max_f32", [148], steps=(8, 4, 2))
        self.swap_allreduce("v_max_f32", [148], [149], 16)
        A("v_sub_f32 v144, v144, v148")
        A("v_exp_f32 v144, v144")
        self.nop(1)
        A("v_mul_f32 v145, v145, v144")
        self.row_allreduce("v_add_f32", [145], steps=(8, 4, 2))
        self.swap_allreduce("v_add_f32", [145], [149], 16)
        A("v_rcp_f32 v145, v145")
        for w in range(4):
            A(f"v_sub_f32 v{140+w}, v{128+2*w}, v148")
        for w in range(4):
            A(f"v_exp_f32 v{140+w}, v{140+w}")
        self.nop(1)
        for w in range(4):
            A(f"v_mul_f32 v{140+w}, v{140+w}, v145")
        A("v_lshlrev_b32 v8, 4, v7")
        A(f"v_add_u32 v8, {L_F:#x}, v8")
        A("s_mov_b64 exec, 3")
        A("ds_write_b128 v8, v[140:143]")
        A("s_mov_b64 exec, -1")
        A("s_cmp_ge_u32 s67, 64")
        A("s_cbranch_scc1 L_notcons")
        A("s_lshl_b32 s68, s56, 6")
        A("s_add_u32 s68, s68, s67")
        A("s_lshl_b32 s69, s56, 11")
        A("s_lshl_b32 s71, s67, 4")
        A("s_add_u32 s69, s69, s71")
        A(f"s_add_u32 s69, s69, {W_BP:#x}")
        A("v_lshlrev_b32 v8, 12, v0")
        A("v_add_u32 v8, s69, v8")
        A("s_mov_b32 s44, 0x40000")
        A("s_mov_b32 s45, 0x80000")
        A("s_mov_b32 s46, 0xc0000")
        A("s_mov_b32 s64, -1")
        A("s_mov_b32 s65, 0")
        loads = []
        groups = []
        for q in range(4):
            o = 128 + 8 * q
            so = f"s{43+q}" if q else "0"
            loads.append(f"buffer_load_dwordx4 v[{o}:{o+3}], v8, s[36:39], {so} offen sc1")
            loads.append(f"buffer_load_dwordx4 v[{o+4}:{o+7}], v8, s[36:39], {so} offen offset:1024 sc1")
            regs = list(range(o, o + 8))
            groups.append((regs, "s[64:65]") if q == 3 else regs)
        if "F" not in p["abl"] and "S" not in p["abl"]:
            self.poll(loads, groups, 160, sleep=8, masked=True)
        for t in range(7):
            A(f"v_cndmask_b32_e64 v{152+t}, 0, v{152+t}, s[64:65]")
        for t in range(7):
            A(f"v_add_f32 v{128+t}, v{128+t}, v{136+t}")
            A(f"v_add_f32 v{144+t}, v{144+t}, v{152+t}")
        for t in range(7):
            A(f"v_add_f32 v{128+t}, v{128+t}, v{144+t}")
        self.reduce7(list(range(128, 135)), 135)
        self.round_bf16(128)
        A("v_mul_f32 v15, v15, v128")
        self.round_bf16(15)
        A("s_lshl_b32 s69, s56, 18")
        A("s_lshr_b32 s71, s67, 4")
        A("s_lshl_b32 s71, s71, 9")
        A("s_add_u32 s69, s69, s71")
        A("s_and_b32 s71, s67, 15")
        A("s_lshl_b32 s71, s71, 4")
        A("s_add_u32 s69, s69, s71")
        A(f"s_add_u32 s69, s69, {W_H2:#x}")
        A("v_lshlrev_b32 v8, 11, v0")
        A("v_add_u32 v8, s69, v8")
        A("s_mov_b32 s66, 0x20000")
        self.srd(48, "s24", "s25", 1792)
        A("s_lshr_b32 s69, s67, 4")
        A("s_mul_i32 s69, s69, 112")
        A("s_and_b32 s71, s67, 15")
        A("s_add_u32 s69, s69, s71")
        A("s_lshl_b32 s69, s69, 1")
        A("s_mul_i32 s71, s56, 896")
        A("s_add_u32 s69, s69, s71")
        A("v_lshrrev_b32 v9, 3, v0")
        A("v_lshlrev_b32 v9, 5, v9")
        A("v_add_u32 v9, s69, v9")
        self.stamp(5)
        if fb:
            for i, vc in enumerate(fb["vcp"]):
                A("s_barrier")
                self.checkpoint(ncp + i)
        A("s_waitcnt lgkmcnt(0)")
        A("s_barrier")
        loads = []
        for q in range(2):
            o = 128 + 8 * q
            so = "s66" if q else "0"
            loads.append(f"buffer_load_dwordx4 v[{o}:{o+3}], v8, s[36:39], {so} offen sc1")
            loads.append(f"buffer_load_dwordx4 v[{o+4}:{o+7}], v8, s[36:39], {so} offen offset:256 sc1")
        if p["b4"]:
            A("s_barrier")
        self.tstamp(3)
        self.poll(loads, [list(range(128, 136)), list(range(136, 144))], 160, sleep=p["h2sleep"], masked=True)
        self.stamp(6)
        self.tstamp(5)
        for t in range(7):
            A(f"v_add_f32 v{128+t}, v{128+t}, v{136+t}")
        self.reduce7(list(range(128, 135)), 135)
        self.round_bf16(128)
        A("v_mul_f32 v128, v14, v128")
        self.round_bf16(128)
        A("v_add_f32 v128, v128, v15")
        A("v_cvt_pk_bf16_f32 v128, v128, v128")
        A("s_mov_b32 s64, 0x01010101")
        A("s_mov_b32 s65, 0x00010101")
        A("s_mov_b64 exec, s[64:65]")
        A("buffer_store_short v128, v9, s[48:51], 0 offen")
        A("s_cmp_lg_u32 s68, 0")
        A("s_cbranch_scc1 L_hend")
        A("s_mov_b64 exec, 1")
        A("v_mov_b32 v130, s76")
        A("v_mov_b32 v131, 0")
        A("buffer_store_dword v130, v131, s[36:39], 0 offen sc1")
        A("s_branch L_hend")
        self.lab("L_notcons")
        if fb:
            for i, vc in enumerate(fb["vcp"]):
                A("s_barrier")
                self.checkpoint(ncp + i)
        A("s_waitcnt lgkmcnt(0)")
        A("s_barrier")
        self.lab("L_hend")
        self.write_stamps()


if __name__ == "__main__":
    import json
    out = sys.argv[1]
    kw = json.loads(sys.argv[2]) if len(sys.argv) > 2 else {}
    open(out, "w").write(G(**kw).gen())
```

```python
import sys, math, struct

KNAME = "gated_mix__gqa_block_cached__glu_gated_swiglu__decode_kernel"

HEADER = """; Kernarg layout for this problem (104 bytes, ptrs only, base s[0:1]):
"""

L_SC = 0x0000
L_Q = 0x4000
L_TAG = 0x4400
L_F = 0x4420
L_ST = 0x4480
L_LV = 0x4404
L_X = 0x4800
L_PART = 0x5000
L_WQ = 0x7000
L_W1 = 0xA800
L_W3 = 0xC400
L_W2 = 0xE000
L_WO = 0x10000
LDS_BYTES = 0x17000

W_EPOCH = 0
W_Q = 0x1000
W_ST = 0x10000
W_H1 = 0x100000
W_H2 = 0x200000
W_BP = 0x300000
W_FP = 0x80000
WS_USED = 0x400000

def f2u(f):
    return struct.unpack("<I", struct.pack("<f", f))[0]

LOG2E = 1.4426950408889634

class G:
    def __init__(self, **p):
        self.L = []
        self.p = dict(pace=10, stamps=False, round_scores=True, spin=0x40000, kflags="nt", vflags="nt",
                      mapping="x128", b0=True, wflags="", qflags="", abl="", cpref=True, fflags=None, dbgtime=False, hst=False, fpace=2, wo_late=True, caps=(6,), vcaps=None, tst=False, h1sleep=2, h2sleep=2, b4=True, tlb=False, eit=0, ecap=12, fb=None, prof=False, fst=False, wo1=12, wopace=4, b2b=8)
        self.p.update(p)
        self.nlab = 0
        self.nstamp = 0

    def A(self, s):
        self.L.append("    " + s)

    def lab(self, name):
        self.L.append(name + ":")

    def newlab(self, base):
        self.nlab += 1
        return f"L_{base}{self.nlab}"

    def nop(self, n):
        if n > 0:
            self.A(f"s_nop {n-1}")

    def hstamp(self, k):
        if self.p["hst"]:
            self.A(f"s_memrealtime s[{80+2*k}:{81+2*k}]")

    def stamp(self, k):
        if (self.p["hst"] or self.p["tst"] or self.p["fst"]) and k not in (0, 7):
            return
        if self.p["stamps"] or self.p["dbgtime"]:
            self.A(f"s_memrealtime s[{80+2*k}:{81+2*k}]")

    def write_stamps(self):
        A = self.A
        if self.p["dbgtime"]:
            self.stamp(7)
            A("s_mov_b64 exec, 1")
            A("s_waitcnt vmcnt(0) lgkmcnt(0)")
            A("s_not_b32 s80, s80")
            A("s_cmp_eq_u32 s3, 4")
            A("s_cselect_b32 s68, 32, 0")
            A("v_mov_b32 v12, s68")
            for k in range(8):
                A(f"v_mov_b32 v13, s{80+2*k}")
                A(f"global_atomic_umax v12, v13, s[26:27] offset:{4*k}")
            return
        if not self.p["stamps"]:
            return
        self.stamp(7)
        A("s_mov_b64 exec, -1")
        A("s_mul_i32 s68, s2, 5")
        A("s_add_u32 s68, s68, s3")
        A("s_lshl_b32 s69, s68, 4")
        A("s_add_u32 s69, s69, 0x20000000")
        A("s_lshl_b32 s68, s68, 7")
        A("s_add_u32 s68, s68, 0x21000000")
        A("s_waitcnt vmcnt(0) lgkmcnt(0)")
        if self.p["prof"]:
            A("s_sub_u32 s71, s69, 0x20000000")
            A("s_lshl_b32 s71, s71, 4")
            A("s_add_u32 s71, s71, 0x22000000")
            A("v_lshlrev_b32 v12, 2, v0")
            A("v_add_u32 v12, s71, v12")
            A("global_store_dword v12, v61, s[28:29]")
            A("s_waitcnt vmcnt(0)")
        A("v_mov_b32 v12, s69")
        A("v_mov_b32 v13, s68")
        for i in range(16):
            A(f"v_mov_b32 v{16+i}, s{80+i}")
        A("v_mov_b32 v32, s80"); A("v_mov_b32 v33, s81"); A("v_mov_b32 v34, s94"); A("v_mov_b32 v35, s95")
        A("s_mov_b64 exec, 1")
        A("global_store_dwordx4 v12, v[32:35], s[28:29]")
        for i in range(4):
            A(f"global_store_dwordx4 v13, v[{16+4*i}:{19+4*i}], s[28:29] offset:{16*i}")
        A("s_waitcnt vmcnt(0)")

    def row_allreduce(self, op, regs, steps=(8, 4, 2, 1)):
        A = self.A
        self.nop(2)
        for st in steps:
            for r in regs:
                A(f"{op}_dpp v{r}, v{r}, v{r} row_ror:{st} row_mask:0xf bank_mask:0xf")
            if len(regs) < 3:
                self.nop(3 - len(regs))

    def swap_allreduce(self, op, regs, tmps, which):
        A = self.A
        for r, t in zip(regs, tmps):
            A(f"v_mov_b32 v{t}, v{r}")
        self.nop(2)
        for r, t in zip(regs, tmps):
            A(f"v_permlane{which}_swap_b32 v{r}, v{t}")
        self.nop(1)
        for r, t in zip(regs, tmps):
            A(f"{op} v{r}, v{r}, v{t}")

    def round_bf16(self, r, t=None):
        A = self.A
        A(f"v_cvt_pk_bf16_f32 v{r}, v{r}, v{r}")
        A(f"v_and_b32 v{r}, s62, v{r}")

    def reduce7(self, v, z):
        A = self.A
        A(f"v_mov_b32 v{z}, 0")
        w = list(v) + [z]
        self.nop(2)
        for i in range(4):
            A(f"v_permlane32_swap_b32 v{w[i]}, v{w[i+4]}")
        self.nop(1)
        for i in range(4):
            A(f"v_add_f32 v{w[i]}, v{w[i]}, v{w[i+4]}")
        self.nop(2)
        for i in range(2):
            A(f"v_permlane16_swap_b32 v{w[i]}, v{w[i+2]}")
        self.nop(1)
        for i in range(2):
            A(f"v_add_f32 v{w[i]}, v{w[i]}, v{w[i+2]}")
        self.nop(2)
        A(f"v_add_f32_dpp v{w[0]}, v{w[0]}, v{w[0]} row_ror:8 row_mask:0xf bank_mask:0x3")
        A(f"v_add_f32_dpp v{w[0]}, v{w[1]}, v{w[1]} row_ror:8 row_mask:0xf bank_mask:0xc")
        self.nop(2)
        A(f"v_add_f32_dpp v{w[0]}, v{w[0]}, v{w[0]} row_half_mirror row_mask:0xf bank_mask:0xf")
        self.nop(2)
        A(f"v_add_f32_dpp v{w[0]}, v{w[0]}, v{w[0]} quad_perm:[1,0,3,2] row_mask:0xf bank_mask:0xf")
        self.nop(2)
        A(f"v_add_f32_dpp v{w[0]}, v{w[0]}, v{w[0]} quad_perm:[2,3,0,1] row_mask:0xf bank_mask:0xf")

    def srd(self, d, lo, hi, nbytes):
        A = self.A
        A(f"s_mov_b32 s{d}, {lo}")
        A(f"s_mov_b32 s{d+1}, {hi}")
        A(f"s_mov_b32 s{d+2}, {nbytes:#x}")
        A(f"s_mov_b32 s{d+3}, 0x00020000")

    def poll(self, loads, groups, tmp, sleep=0, masked=False):
        A = self.A
        lp = self.newlab("poll")
        done = self.newlab("pdone")
        A(f"s_mov_b32 s70, {self.p['spin']:#x}")
        self.lab(lp)
        for l in loads:
            A(l)
        A("s_waitcnt vmcnt(0)")
        first = True
        for gi, g in enumerate(groups):
            mask = None
            if isinstance(g, tuple):
                g, mask = g
            regs = list(g)
            t = tmp + gi
            if len(regs) == 3:
                A(f"v_bitop3_b32 v{t}, v{regs[0]}, v{regs[1]}, v{regs[2]} bitop3:0x96")
            else:
                A(f"v_bitop3_b32 v{t}, v{regs[0]}, v{regs[1]}, v{regs[2]} bitop3:0x96")
                rest = regs[3:]
                while len(rest) >= 2:
                    A(f"v_bitop3_b32 v{t}, v{t}, v{rest[0]}, v{rest[1]} bitop3:0x96")
                    rest = rest[2:]
                if rest:
                    A(f"v_xor_b32 v{t}, v{t}, v{rest[0]}")
            dst = "s[72:73]" if first else "s[74:75]"
            A(f"v_cmp_ne_u32_e64 {dst}, s58, v{t}")
            if mask is not None:
                A(f"s_and_b64 {dst}, {dst}, {mask}")
            if not first:
                A("s_or_b64 s[72:73], s[72:73], s[74:75]")
            first = False
        A("s_cmp_eq_u64 s[72:73], 0")
        A(f"s_cbranch_scc1 {done}")
        if masked:
            A("s_mov_b64 exec, s[72:73]")
        if sleep:
            A(f"s_sleep {sleep}")
        A("s_sub_u32 s70, s70, 1")
        A("s_cmp_lg_u32 s70, 0")
        A(f"s_cbranch_scc1 {lp}")
        self.lab(done)
        if masked:
            A("s_mov_b64 exec, -1")

    def gen(self):
        A = self.A
        p = self.p
        L = self.L
        L.append(HEADER + f"; @launch grid=(256,1,1) block=(320,1,1) lds={LDS_BYTES}")
        L.append('.amdgcn_target "amdgcn-amd-amdhsa--gfx950"')
        L.append(".text")
        L.append(f".globl {KNAME}")
        L.append(".p2align 8")
        L.append(f".type {KNAME},@function")
        self.lab(KNAME)
        A("s_cmp_ge_u32 s2, 256")
        A("s_cbranch_scc1 L_end")
        A("s_load_dwordx16 s[4:19], s[0:1], 0")
        A("s_load_dwordx8 s[20:27], s[0:1], 64")
        A("s_load_dwordx2 s[28:29], s[0:1], 96")
        if p["dbgtime"]:
            for k in range(1, 8):
                A(f"s_mov_b32 s{80+2*k}, 0")
        self.stamp(0)
        A("v_lshrrev_b32 v1, 6, v0")
        A("v_and_b32 v0, 63, v0")
        A("v_readfirstlane_b32 s3, v1")
        if p["mapping"] == "x128":
            A("s_and_b32 s52, s2, 127")
            A("s_lshr_b32 s53, s2, 7")
        elif p["mapping"] == "x128b":
            A("s_and_b32 s52, s2, 7")
            A("s_lshl_b32 s52, s52, 4")
            A("s_bfe_u32 s53, s2, 0x40003")
            A("s_add_u32 s52, s52, s53")
            A("s_lshr_b32 s53, s2, 7")
        A("s_lshr_b32 s54, s52, 3")
        A("s_and_b32 s55, s52, 7")
        A("s_lshl_b32 s55, s55, 1")
        A("s_add_u32 s55, s55, s53")
        A("s_lshr_b32 s56, s54, 3")
        A("s_and_b32 s57, s54, 7")
        A("s_mov_b32 s62, 0xffff0000")
        A("s_cmp_lg_u32 s3, 4")
        A("s_cbranch_scc1 L_stream")
        self.helper()
        A("s_endpgm")
        self.lab("L_stream")
        self.stream()
        self.lab("L_end")
        A("s_endpgm")
        L.append('.section .rodata,"a"')
        L.append(".p2align 6")
        L.append(f".amdhsa_kernel {KNAME}")
        L.append("  .amdhsa_next_free_vgpr 256")
        L.append("  .amdhsa_next_free_sgpr 102")
        L.append("  .amdhsa_accum_offset 256")
        L.append("  .amdhsa_group_segment_fixed_size 0")
        L.append("  .amdhsa_kernarg_size 104")
        L.append("  .amdhsa_user_sgpr_count 2")
        L.append("  .amdhsa_user_sgpr_kernarg_segment_ptr 1")
        L.append("  .amdhsa_system_sgpr_workgroup_id_x 1")
        L.append("  .amdhsa_float_denorm_mode_32 3")
        L.append(".end_amdhsa_kernel")
        return "\n".join(L) + "\n"

    def ring(self, rp, s, j):
        return 128 + ((rp * 2 + s) * 4 + j) * 4

    def ldk(self, rp, s, j):
        r = self.ring(rp, s, j)
        sb = "s61" if s else "s60"
        self.A(f"buffer_load_dwordx4 v[{r}:{r+3}], v1, s[32:35], {sb} offen offset:{j*128} {self.p['kflags']}")

    def vring(self, rp, s, j):
        return 64 + ((rp * 2 + s) * 4 + j) * 4

    def ldv(self, rp, s, j, s0="s60", s1="s61"):
        r = self.vring(rp, s, j)
        sb = s1 if s else s0
        self.A(f"buffer_load_dwordx4 v[{r}:{r+3}], v2, s[40:43], {sb} offen offset:{j*1024} {self.p['vflags']}")

    def pace(self, caps, n):
        A = self.A
        fb = self.p["fb"]
        if not fb:
            A(f"s_waitcnt vmcnt({caps[n % len(caps)]-1})")
            return 1
        sk = self.newlab("sk")
        A(f"s_waitcnt vmcnt({fb['hi']-1})")
        A(f"s_bitcmp1_b32 s79, {n % 16}")
        A(f"s_cbranch_scc0 {sk}")
        A(f"s_waitcnt vmcnt({fb['lo']-1})")
        self.lab(sk)
        return 3

    def checkpoint(self, c):
        A = self.A
        fb = self.p["fb"]
        A("s_mov_b32 s78, 1")
        A(f"s_atomic_add s78, s[26:27], {(c & 1) * 128 + (c >> 1) * 4:#x} glc")
        A("s_waitcnt lgkmcnt(0)")
        A(f"s_mov_b32 s71, {fb['masks'][0]:#x}")
        for th, m in zip(fb["th"], fb["masks"][1:]):
            A(f"s_cmp_ge_u32 s78, {th}")
            A(f"s_cselect_b32 s71, {m:#x}, s71")
        A("v_mov_b32 v250, s71")
        A(f"v_mov_b32 v251, {L_LV:#x}")
        A("ds_write_b32 v251, v250")

    def prof(self):
        if self.p["prof"]:
            A = self.A
            A("s_memrealtime s[96:97]")
            A("s_waitcnt lgkmcnt(0)")
            A("v_writelane_b32 v61, s96, m0")
            A("s_add_u32 m0, m0, 1")

    def fstamp(self, k):
        if self.p["fst"]:
            self.A(f"s_memrealtime s[{80+2*k}:{81+2*k}]")

    def tstamp(self, k):
        if self.p["tst"]:
            self.A(f"s_memrealtime s[{80+2*k}:{81+2*k}]")

    def stream(self):
        A = self.A
        p = self.p
        caps = list(p["caps"])
        vcaps = list(p["vcaps"] or caps)
        cmax = max(caps)
        fb = p["fb"]
        A("v_and_b32 v12, 15, v0")
        A("v_lshrrev_b32 v13, 4, v0")
        A("v_lshrrev_b32 v14, 1, v12")
        A("v_lshlrev_b32 v1, 9, v14")
        A("v_and_b32 v15, 1, v12")
        A("v_lshl_or_b32 v1, v15, 6, v1")
        A("v_lshl_or_b32 v1, v13, 4, v1")
        A("s_lshl_b32 s66, s53, 2")
        A("s_add_u32 s66, s66, s3")
        A("s_lshl_b32 s66, s66, 13")
        A("s_lshl_b32 s67, s52, 21")
        A("s_mov_b32 s60, s66")
        A("s_mov_b32 s34, 0x200000")
        A("s_mov_b32 s35, 0x00020000")
        A("s_waitcnt lgkmcnt(0)")
        A("s_add_u32 s32, s6, s67")
        A("s_addc_u32 s33, s7, 0")
        self.hstamp(1)
        if p["b0"]:
            A("s_barrier")
        self.hstamp(2)
        n = 0
        for rp in range(4):
            A("s_add_u32 s61, s60, 4096")
            for s in range(2):
                for j in range(4):
                    if n == cmax:
                        self.hstamp(3)
                    if n >= cmax:
                        A(f"s_waitcnt vmcnt({caps[n % len(caps)]-1})")
                    if n == cmax:
                        self.hstamp(4)
                    if n == cmax + 9:
                        self.hstamp(5)
                    self.ldk(rp, s, j)
                    n += 1
                    if n == cmax:
                        self.stream_setup()
            A("s_add_u32 s60, s60, 0x10000")
        self.stamp(1)
        self.hstamp(6)
        if "b1" not in p["abl"]:
            A("s_barrier")
        for j in range(4):
            A(f"ds_read_b128 v[{16+4*j}:{19+4*j}], v12 offset:{j*128}")
        A(f"ds_read_b32 v13, v13")
        A("s_mov_b32 s59, 0")
        A("s_waitcnt lgkmcnt(0)")
        A("v_readfirstlane_b32 s58, v13")
        if fb:
            A(f"s_mov_b32 s79, {fb['init']:#x}")
            A(f"v_mov_b32 v63, {L_LV:#x}")
            cmax = fb["hi"]
        self.stamp(2)
        def kset(rp, s, mid):
            d = 32 + 4 * s
            for j in range(4):
                r = self.ring(rp, s, j)
                c = "0" if j == 0 else f"v[{d}:{d+3}]"
                A(f"v_mfma_f32_16x16x32_bf16 v[{d}:{d+3}], v[{16+4*j}:{19+4*j}], v[{r}:{r+3}], {c}")
            k = mid()
            self.nop(max(0, 8 - k))
            t = 40 + 2 * s
            A(f"v_add_f32_dpp v{t}, v{d+1}, v{d} quad_perm:[1,1,3,3] row_mask:0xf bank_mask:0xf")
            A(f"v_add_f32_dpp v{t+1}, v{d+3}, v{d+2} quad_perm:[1,1,3,3] row_mask:0xf bank_mask:0xf")
            if s == 1:
                A("s_mov_b64 exec, 0x5555")
                A(f"ds_write_b128 v4, v[40:43] offset:{rp*128}")
                A("s_mov_b64 exec, -1")
        if p["prof"]:
            A("s_mov_b32 m0, 0")
            A("v_mov_b32 v61, 0")
        self.lab("L_kloop")
        n = 0
        for rp in range(4):
            self.prof()
            A("s_add_u32 s61, s60, 4096")
            for s in range(2):
                def mid():
                    nonlocal n
                    for j in range(4):
                        self.pace(caps, n)
                        self.ldk(rp, s, j)
                        n += 1
                    if fb and rp == 2 and s == 0:
                        A("ds_read_b32 v62, v63")
                    return 8
                kset(rp, s, mid)
            A("s_add_u32 s60, s60, 0x10000")
        A("v_add_u32 v4, 512, v4")
        A("s_add_u32 s59, s59, 1")
        if fb:
            A("s_waitcnt lgkmcnt(0)")
            A("v_readfirstlane_b32 s79, v62")
            for kc in fb["kcp"]:
                sk = self.newlab("cb")
                A(f"s_cmp_lg_u32 s59, {kc}")
                A(f"s_cbranch_scc1 {sk}")
                A("s_barrier")
                self.lab(sk)
        A("s_cmp_lt_u32 s59, 7")
        A("s_cbranch_scc1 L_kloop")
        A("s_mov_b32 s60, s66")
        A("s_add_u32 s61, s60, 4096")
        A("s_add_u32 s68, s60, 0x10000")
        A("s_add_u32 s69, s60, 0x11000")
        vseq = [(rp, s, j) for rp in range(2) for s in range(2) for j in range(4)]
        nv = 0
        def vissue(paced):
            nonlocal nv
            rp, s, j = vseq[nv]
            if paced:
                A(f"s_waitcnt vmcnt({max(caps)-1})")
            if rp == 0:
                self.ldv(rp, s, j)
            else:
                self.ldv(rp, s, j, "s68", "s69")
            nv += 1
        assert cmax <= 8
        for rp in range(4):
            for s in range(2):
                idx = rp * 2 + s
                def mid():
                    if idx < 5:
                        vissue(True)
                        return 2
                    if idx == 5:
                        while nv < max(caps):
                            vissue(True)
                        A(f"s_waitcnt vmcnt({nv})")
                        while nv < 16:
                            vissue(False)
                        return 8
                    return 0
                kset(rp, s, mid)
        A("s_add_u32 s60, s60, 0x20000")
        self.stamp(3)
        S = 128
        A("s_waitcnt lgkmcnt(0)")
        for i in range(4):
            A(f"ds_read_b128 v[{S+4*i}:{S+4*i+3}], v14 offset:{i*1024}")
        A(f"s_mov_b32 s63, {f2u(LOG2E/16):#x}")
        A("s_waitcnt lgkmcnt(0)")
        if p["round_scores"]:
            for i in range(8):
                a, b = S + 2 * i, S + 2 * i + 1
                A(f"v_cvt_pk_bf16_f32 v{b}, v{a}, v{b}")
                A(f"v_lshlrev_b32 v{a}, 16, v{b}")
                A(f"v_and_b32 v{b}, s62, v{b}")
        m = [148, 150]
        T2 = [152, 153]
        for h in range(2):
            A(f"v_max3_f32 v{m[h]}, v{S+h}, v{S+2+h}, v{S+4+h}")
            A(f"v_max3_f32 v{m[h]}, v{m[h]}, v{S+6+h}, v{S+8+h}")
            A(f"v_max3_f32 v{m[h]}, v{m[h]}, v{S+10+h}, v{S+12+h}")
            A(f"v_max_f32 v{m[h]}, v{m[h]}, v{S+14+h}")
        self.row_allreduce("v_max_f32", m)
        self.swap_allreduce("v_max_f32", m, T2, 16)
        self.swap_allreduce("v_max_f32", m, T2, 32)
        for h in range(2):
            A(f"v_mul_f32 v{m[h]}, s63, v{m[h]}")
        for i in range(16):
            A(f"v_fma_f32 v{S+i}, v{S+i}, s63, -v{m[i&1]}")
        for i in range(16):
            A(f"v_exp_f32 v{S+i}, v{S+i}")
        l = [149, 151]
        self.nop(1)
        for i in range(4):
            A(f"ds_write_b128 v14, v[{S+4*i}:{S+4*i+3}] offset:{i*1024}")
        for h in range(2):
            A(f"v_add_f32 v{l[h]}, v{S+h}, v{S+2+h}")
            for i in range(2, 8):
                A(f"v_add_f32 v{l[h]}, v{l[h]}, v{S+2*i+h}")
        A("s_waitcnt lgkmcnt(0)")
        PB = 160
        for j in range(4):
            A(f"ds_read_b128 v[{PB+4*j}:{PB+4*j+3}], v5 offset:{j*32}")
        self.row_allreduce("v_add_f32", l)
        self.swap_allreduce("v_add_f32", l, T2, 16)
        self.swap_allreduce("v_add_f32", l, T2, 32)
        A("s_mov_b64 exec, 1")
        A("ds_write_b128 v15, v[148:151]")
        A("s_mov_b64 exec, -1")
        AC = 16
        for i in range(16):
            A(f"v_mov_b32 v{AC+i}, 0")
        A("s_mov_b32 s59, 0")
        A("s_waitcnt lgkmcnt(0)")
        if "b2" not in p["abl"]:
            A("s_barrier")
        A("s_waitcnt vmcnt(15)")
        self.stamp(4)
        def vbody(last, vcaps=vcaps):
            n = 0
            for rp in range(2):
                P = PB + 16 * rp
                Pn = PB + 16 * (1 - rp)
                self.prof()
                if not last:
                    A("s_add_u32 s61, s60, 4096")
                A("s_waitcnt lgkmcnt(0)")
                if not (last and rp == 1):
                    for j in range(4):
                        A(f"ds_read_b128 v[{Pn+4*j}:{Pn+4*j+3}], v5 offset:{(rp+1)*128 + j*32}")
                    if fb and not last and rp == 0:
                        A("ds_read_b32 v62, v63")
                    if fb and not last and rp == 1:
                        A("v_readfirstlane_b32 s79, v62")
                for s in range(2):
                    for j in range(4):
                        r = self.vring(rp, s, j)
                        if last and 15 - n < (fb["hi"] if fb else max(vcaps)):
                            A(f"s_waitcnt vmcnt({15 - n})")
                        for d in range(4):
                            A(f"v_lshlrev_b32 v{52+2*d}, 16, v{r+d}")
                            A(f"v_and_b32 v{53+2*d}, s62, v{r+d}")
                        pp = P + 4 * j + 2 * s
                        for h in range(2):
                            for d in range(4):
                                a = AC + h * 8 + 2 * d
                                A(f"v_pk_fma_f32 v[{a}:{a+1}], v[{52+2*d}:{53+2*d}], v[{pp}:{pp+1}], v[{a}:{a+1}] op_sel:[0,{h},0] op_sel_hi:[1,{h},1]")
                        if not last:
                            self.pace(vcaps, n)
                            self.ldv(rp, s, j)
                        n += 1
                if not last:
                    A("s_add_u32 s60, s60, 0x10000")
        self.lab("L_vloop")
        vbody(False)
        A("v_add_u32 v5, 256, v5")
        A("s_add_u32 s59, s59, 1")
        if p["b2b"]:
            sk = self.newlab("cb")
            A(f"s_cmp_lg_u32 s59, {p['b2b']}")
            A(f"s_cbranch_scc1 {sk}")
            A("s_barrier")
            self.lab(sk)
        if fb:
            for vc in fb["vcp"]:
                sk = self.newlab("cb")
                A(f"s_cmp_lg_u32 s59, {vc}")
                A(f"s_cbranch_scc1 {sk}")
                A("s_barrier")
                self.lab(sk)
        A(f"s_cmp_lt_u32 s59, {15 - p['eit']}")
        A("s_cbranch_scc1 L_vloop")
        if p["eit"]:
            self.lab("L_vloop2")
            vbody(False, [p["ecap"]])
            A("v_add_u32 v5, 256, v5")
            A("s_add_u32 s59, s59, 1")
            A("s_cmp_lt_u32 s59, 15")
            A("s_cbranch_scc1 L_vloop2")
            vbody(True, [p["ecap"]])
        else:
            vbody(True)
        self.stamp(5)
        self.tstamp(1)
        self.nop(2)
        for e in range(8):
            A(f"v_permlane32_swap_b32 v{AC+e}, v{AC+8+e}")
        for e in range(8):
            A(f"v_add_f32 v{AC+e}, v{AC+e}, v{AC+8+e}")
        A(f"ds_write_b128 v9, v[{AC}:{AC+3}]")
        A(f"ds_write_b128 v9, v[{AC+4}:{AC+7}] offset:16")
        A("s_waitcnt lgkmcnt(0)")
        self.tstamp(2)
        A("s_barrier")
        self.tstamp(3)
        for w in range(4):
            A(f"ds_read_b64 v[{80+2*w}:{81+2*w}], v10 offset:{w*2048}")
        A("ds_read_b128 v[88:91], v60")
        def wot(t):
            A(f"ds_read_b64_tr_b16 v[{128+4*t}:{129+4*t}], v11 offset:{t*32}")
            A(f"ds_read_b64_tr_b16 v[{130+4*t}:{131+4*t}], v11 offset:{t*32+4*896}")
        A("s_waitcnt lgkmcnt(0)")
        A("v_pk_mul_f32 v[92:93], v[80:81], v[88:89] op_sel:[0,0] op_sel_hi:[1,0]")
        A("v_pk_fma_f32 v[92:93], v[82:83], v[88:89], v[92:93] op_sel:[0,1,0] op_sel_hi:[1,1,1]")
        A("v_pk_fma_f32 v[92:93], v[84:85], v[90:91], v[92:93] op_sel:[0,0,0] op_sel_hi:[1,0,1]")
        A("v_pk_fma_f32 v[92:93], v[86:87], v[90:91], v[92:93] op_sel:[0,1,0] op_sel_hi:[1,1,1]")
        A("v_bitop3_b32 v94, v92, v93, s58 bitop3:0x96")
        A("v_mov_b32 v95, v94")
        A("buffer_store_dwordx4 v[92:95], v6, s[36:39], 0 offen sc1")
        self.tstamp(4)
        for t in range(7):
            wot(t)
        X = 96
        loads = [f"buffer_load_dwordx4 v[{X+4*i}:{X+4*i+3}], v7, s[36:39], 0 offen offset:{i*64} sc1" for i in range(4)]
        self.poll(loads, [[X + 4 * i, X + 4 * i + 1, X + 4 * i + 2] for i in range(4)], 112, sleep=p["h1sleep"], masked=True)
        self.stamp(6)
        self.tstamp(5)
        vals = [X + 4 * i + k for i in range(4) for k in range(2)]
        self.row_allreduce("v_add_f32", vals)
        for i in range(4):
            A(f"v_cvt_pk_bf16_f32 v{116+i}, v{X+4*i}, v{X+4*i+1}")
        A("s_waitcnt lgkmcnt(0)")
        self.nop(1)
        for t in range(7):
            A(f"v_mfma_f32_16x16x32_bf16 v[{160+4*t}:{163+4*t}], v[116:119], v[{128+4*t}:{131+4*t}], 0")
        D = [160 + 4 * t for t in range(7)]
        self.nop(8)
        A(f"v_bitop3_b32 v123, v{D[0]}, v{D[1]}, s58 bitop3:0x96")
        A(f"v_bitop3_b32 v123, v123, v{D[2]}, v{D[3]} bitop3:0x96")
        A(f"v_bitop3_b32 v123, v123, v{D[4]}, v{D[5]} bitop3:0x96")
        A(f"v_xor_b32 v123, v123, v{D[6]}")
        for i in range(3):
            A(f"v_cndmask_b32_e64 v{120+i}, v{D[i]}, v{D[4+i]}, s[64:65]")
        A(f"v_cndmask_b32_e64 v123, v{D[3]}, v123, s[64:65]")
        A("s_mov_b32 exec_hi, 0")
        A("buffer_store_dwordx4 v[120:123], v8, s[36:39], 0 offen sc1")
        self.tstamp(6)
        if p["b4"] and p["stamps"]:
            A("s_barrier")
        self.write_stamps()
        A("s_endpgm")

    def stream_setup(self):
        A = self.A
        self.srd(36, "s28", "s29", WS_USED)
        A("s_mov_b32 s64, 0xffff0000")
        A("s_mov_b32 s65, 0")
        A("s_lshl_b32 s68, s3, 12")
        A("v_lshlrev_b32 v4, 4, v14")
        A("v_add_u32 v4, s68, v4")
        A("v_lshlrev_b32 v2, 4, v0")
        A("v_lshrrev_b32 v61, 5, v0")
        A("v_lshlrev_b32 v5, 4, v61")
        A("v_add_u32 v5, s68, v5")
        A("s_add_u32 s40, s8, s67")
        A("s_addc_u32 s41, s9, 0")
        A("s_mov_b32 s42, 0x200000")
        A("s_mov_b32 s43, 0x00020000")
        A("s_lshl_b32 s69, s3, 11")
        A(f"s_add_u32 s69, s69, {L_PART}")
        A("v_lshlrev_b32 v9, 5, v0")
        A("v_add_u32 v9, s69, v9")
        A("s_lshl_b32 s69, s3, 9")
        A(f"s_add_u32 s69, s69, {L_PART}")
        A("v_lshlrev_b32 v10, 3, v0")
        A("v_add_u32 v10, s69, v10")
        A("s_lshr_b32 s69, s3, 1")
        A("s_lshl_b32 s69, s69, 4")
        A(f"s_add_u32 s69, s69, {L_F}")
        A("v_mov_b32 v60, s69")
        A("s_lshl_b32 s69, s54, 4")
        A("s_lshl_b32 s71, s3, 2")
        A("s_add_u32 s69, s69, s71")
        A("s_lshl_b32 s69, s69, 12")
        A("s_lshl_b32 s71, s55, 8")
        A("s_add_u32 s69, s69, s71")
        A(f"s_add_u32 s69, s69, {W_H1:#x}")
        A("v_lshlrev_b32 v6, 12, v13")
        A("v_and_b32 v63, 3, v0")
        A("v_lshl_or_b32 v6, v63, 6, v6")
        A("v_bfe_u32 v63, v0, 2, 2")
        A("v_lshl_or_b32 v6, v63, 4, v6")
        A("v_add_u32 v6, s69, v6")
        A("s_lshl_b32 s69, s54, 4")
        A("s_add_u32 s69, s69, s55")
        A("s_lshl_b32 s69, s69, 12")
        A(f"s_add_u32 s69, s69, {W_H1:#x}")
        A("v_lshlrev_b32 v7, 8, v12")
        A("v_lshl_or_b32 v7, v13, 4, v7")
        A("v_add_u32 v7, s69, v7")
        A("s_lshl_b32 s69, s54, 4")
        A("s_add_u32 s69, s69, s55")
        A("s_lshl_b32 s69, s69, 11")
        A("s_lshl_b32 s71, s3, 9")
        A("s_add_u32 s69, s69, s71")
        A(f"s_add_u32 s69, s69, {W_H2:#x}")
        A("v_add_u32 v8, s69, v2")
        A("v_lshrrev_b32 v63, 2, v12")
        A("v_lshl_add_u32 v63, v13, 3, v63")
        A("v_mul_u32_u24 v11, 896, v63")
        A("v_and_b32 v63, 3, v12")
        A("v_lshl_add_u32 v11, v63, 3, v11")
        A("s_mul_i32 s69, s3, 224")
        A(f"s_add_u32 s69, s69, {L_WO:#x}")
        A("v_add_u32 v11, s69, v11")
        A("v_and_b32 v63, 1, v14")
        A("v_lshlrev_b32 v12, 9, v63")
        A("v_lshl_or_b32 v12, v15, 6, v12")
        A("v_lshl_or_b32 v12, v13, 4, v12")
        A(f"v_add_u32 v12, {L_Q:#x}, v12")
        A(f"v_mov_b32 v13, {L_TAG:#x}")
        A("v_lshlrev_b32 v14, 4, v0")
        A("v_add_u32 v14, s68, v14")
        A("s_lshl_b32 s69, s3, 4")
        A(f"s_add_u32 s69, s69, {L_ST:#x}")
        A("v_mov_b32 v15, s69")

    def dma(self, vaddr, srd, soff, ldsaddr, fl=None):
        if fl is None:
            fl = self.p["wflags"]
            if "w" in self.p["abl"]:
                return
            if "f" in self.p["abl"] and vaddr == 1:
                return
            if "o" in self.p["abl"] and vaddr == 2:
                return
        A = self.A
        A(f"s_mov_b32 m0, {ldsaddr:#x}")
        if isinstance(soff, int):
            if soff == 0:
                so = "0"
                self.nop(1)
            else:
                A(f"s_mov_b32 s71, {soff:#x}")
                so = "s71"
        else:
            so = soff
            self.nop(1)
        A(f"buffer_load_dwordx4 v{vaddr}, s[{srd}:{srd+3}], {so} offen {fl} lds")

    def helper(self):
        A = self.A
        p = self.p
        A("s_setprio 3")
        A("v_and_b32 v12, 15, v0")
        A("v_lshrrev_b32 v13, 4, v0")
        A("s_and_b32 s66, s2, 7")
        A("s_lshr_b32 s67, s2, 5")
        A("s_lshl_b32 s67, s67, 3")
        A("s_or_b32 s66, s66, s67")
        A("s_lshl_b32 s66, s66, 2")
        A("s_bfe_u32 s67, s2, 0x20003")
        A("s_add_u32 s66, s66, s67")
        A("v_lshrrev_b32 v1, 1, v0")
        A("v_lshlrev_b32 v1, 13, v1")
        A("v_and_b32 v2, 1, v0")
        A("v_lshl_or_b32 v1, v2, 4, v1")
        A("s_lshl_b32 s67, s66, 5")
        A("v_add_u32 v1, s67, v1")
        A("v_lshlrev_b32 v2, 4, v0")
        A("s_waitcnt lgkmcnt(0)")
        self.hstamp(1)
        A("s_load_dword s58, s[28:29], 0")
        self.srd(40, "s10", "s11", 448 * 8192)
        self.srd(44, "s4", "s5", 1792)
        for i in range(0 if "Q" in p["abl"] else 14):
            self.dma(1, 40, i * 0x40000, L_WQ + i * 1024, p["qflags"])
        self.dma(2, 44, 0, L_X, "")
        self.dma(2, 44, 1024, L_X + 1024, "")
        if p["cpref"]:
            A("s_getpc_b64 s[30:31]")
            self.lab("L_pc")
            A("s_lshr_b32 s71, s2, 3")
            A("s_lshl_b32 s71, s71, 10")
            A("s_min_u32 s71, s71, L_end-L_pc-1020")
            A("v_add_u32 v11, s71, v2")
            A("global_load_dwordx4 v[248:251], v11, s[30:31]")
        self.hstamp(2)
        if p["b0"]:
            A("s_barrier")
        if p["tlb"]:
            A("v_mov_b32 v252, s28")
            A("v_mov_b32 v253, s29")
            A("s_lshl_b32 s71, s52, 21")
            A("s_add_u32 s68, s8, s71")
            A("s_addc_u32 s69, s9, 0")
            ents = [("s68", "s69"), ("s16", "s17"), ("s18", "s19"), ("s20", "s21"), ("s22", "s23"), ("s24", "s25")]
            for i, (lo, hi) in enumerate(ents):
                A(f"v_writelane_b32 v252, {lo}, {i+1}")
                A(f"v_writelane_b32 v253, {hi}, {i+1}")
            A("s_lshl_b32 s71, s57, 4")
            A("s_add_u32 s71, s71, s55")
            A("s_mul_i32 s71, s71, 28672")
            A("s_add_u32 s68, s12, s71")
            A("s_addc_u32 s69, s13, 0")
            A("v_writelane_b32 v252, s68, 7")
            A("v_writelane_b32 v253, s69, 7")
            A("s_add_u32 s68, s68, 28668")
            A("s_addc_u32 s69, s69, 0")
            A("v_writelane_b32 v252, s68, 8")
            A("v_writelane_b32 v253, s69, 8")
            A("s_add_u32 s68, s28, 0x200000")
            A("s_addc_u32 s69, s29, 0")
            A("v_writelane_b32 v252, s68, 9")
            A("v_writelane_b32 v253, s69, 9")
            A("global_load_dword v254, v[252:253], off nt")
        self.srd(36, "s28", "s29", WS_USED)
        A("v_lshrrev_b32 v5, 2, v12")
        A("v_lshl_add_u32 v5, v13, 3, v5")
        A("v_and_b32 v6, 3, v12")
        A("v_lshlrev_b32 v3, 5, v5")
        A("v_lshl_or_b32 v3, v6, 3, v3")
        A(f"v_add_u32 v3, {L_WQ:#x}, v3")
        A("v_and_b32 v7, 1, v12")
        A("v_mul_u32_u24 v4, 896, v7")
        A("v_lshl_add_u32 v4, v13, 4, v4")
        A(f"v_add_u32 v4, {L_X:#x}, v4")
        A("v_lshlrev_b32 v8, 6, v7")
        A("v_lshl_or_b32 v8, v13, 4, v8")
        A("s_lshl_b32 s67, s66, 7")
        A(f"s_add_u32 s67, s67, {W_Q:#x}")
        A("v_add_u32 v8, s67, v8")
        A("s_lshl_b32 s67, s57, 12")
        A("s_lshl_b32 s71, s56, 6")
        A("s_add_u32 s67, s67, s71")
        A(f"s_add_u32 s67, s67, {W_Q:#x}")
        A("v_lshrrev_b32 v9, 2, v0")
        A("v_lshlrev_b32 v9, 7, v9")
        A("v_lshl_add_u32 v9, v6, 4, v9")
        A("v_add_u32 v9, s67, v9")
        A("v_lshlrev_b32 v10, 3, v0")
        A(f"v_add_u32 v10, {L_Q:#x}, v10")
        A("s_waitcnt lgkmcnt(0)")
        A("s_add_u32 s76, s58, 2")
        A("s_or_b32 s76, s76, 1")
        A("s_mul_i32 s58, s76, 0x9E3779B1")
        self.hstamp(3)
        A(f"s_waitcnt vmcnt({int(bool(p['tlb'])) + int(bool(p['cpref']))})")
        self.hstamp(4)
        self.stamp(1)
        XB = 16
        WA = 72
        for s in range(14):
            A(f"ds_read_b128 v[{XB+4*s}:{XB+4*s+3}], v4 offset:{s*64}")
            A(f"ds_read_b64_tr_b16 v[{WA+4*s}:{WA+4*s+1}], v3 offset:{s*1024}")
            A(f"ds_read_b64_tr_b16 v[{WA+4*s+2}:{WA+4*s+3}], v3 offset:{s*1024+128}")
            if s >= 4:
                k = s - 4
                A("s_waitcnt lgkmcnt(12)")
                c = "0" if k == 0 else "v[128:131]"
                A(f"v_mfma_f32_16x16x32_bf16 v[128:131], v[{WA+4*k}:{WA+4*k+3}], v[{XB+4*k}:{XB+4*k+3}], {c}")
        for k in range(10, 14):
            A(f"s_waitcnt lgkmcnt({(13-k)*3})")
            A(f"v_mfma_f32_16x16x32_bf16 v[128:131], v[{WA+4*k}:{WA+4*k+3}], v[{XB+4*k}:{XB+4*k+3}], v[128:131]")
        self.nop(8)
        A("v_cvt_pk_bf16_f32 v132, v128, v129")
        A("v_cvt_pk_bf16_f32 v133, v130, v131")
        A("v_bitop3_b32 v134, v132, v133, s58 bitop3:0x96")
        A("v_mov_b32 v135, v134")
        A("s_mov_b32 s64, 0x00030003")
        A("s_mov_b32 s65, 0x00030003")
        A("s_mov_b64 exec, s[64:65]")
        A("buffer_store_dwordx4 v[132:135], v8, s[36:39], 0 offen sc1")
        A("s_mov_b64 exec, -1")
        self.stamp(2)
        self.hstamp(5)
        A("s_lshl_b32 s67, s57, 4")
        A("s_add_u32 s67, s67, s55")
        def wo_dma(a, b):
            if a >= b:
                return
            self.srd(40, "s12", "s13", 4096 * 896)
            A(f"s_mul_i32 s68, s67, 28672")
            for i in range(a, b):
                A(f"s_add_u32 s69, s68, {i*1024}")
                self.dma(2, 40, "s69", L_WO + i * 1024)
                if (i - a) % p["wopace"] == p["wopace"] - 1:
                    A("s_waitcnt vmcnt(0)")
        wo_dma(0, p["wo1"])
        loads = [f"buffer_load_dwordx4 v[{136+4*i}:{139+4*i}], v9, s[36:39], 0 offen offset:{i*2048} sc1" for i in range(2)]
        if "q" not in p["abl"]:
            self.poll(loads, [[136, 137, 138], [140, 141, 142]], 144, masked=True)
        A("ds_write_b64 v10, v[136:137]")
        A("ds_write_b64 v10, v[140:141] offset:512")
        A("v_mov_b32 v144, s58")
        A(f"v_mov_b32 v145, {L_TAG:#x}")
        A("ds_write_b32 v145, v144")
        fb = p["fb"]
        if fb:
            A(f"v_mov_b32 v144, {fb['init']:#x}")
            A("ds_write_b32 v145, v144 offset:4")
        A("s_waitcnt lgkmcnt(0)")
        self.stamp(3)
        self.hstamp(6)
        if "b1" not in p["abl"]:
            A("s_barrier")
        A("s_and_b32 s68, s2, 7")
        A("s_lshr_b32 s69, s2, 6")
        A("s_lshl_b32 s69, s69, 3")
        A("s_add_u32 s68, s68, s69")
        A("s_mov_b32 s78, 0")
        A("s_mov_b32 s77, 0")
        A("v_mov_b32 v248, 0")
        A(f"s_cmp_ge_u32 s68, {0 if 'F' in p['abl'] else 28}")
        A("s_cbranch_scc1 L_noffn")
        A("s_mov_b32 s78, 1")
        A("s_lshl_b32 s68, s68, 3")
        A("s_bfe_u32 s69, s2, 0x30003")
        A("s_add_u32 s77, s68, s69")
        A("v_lshrrev_b32 v8, 3, v0")
        A("v_mul_u32_u24 v1, 3584, v8")
        A("v_and_b32 v8, 7, v0")
        A("v_lshl_add_u32 v1, v8, 4, v1")
        A("s_lshl_b32 s68, s68, 4")
        A(f"s_mul_i32 s71, s69, {56*3584}")
        A("s_add_u32 s68, s68, s71")
        A("v_add_u32 v1, s68, v1")
        A("s_mov_b32 s79, s69")
        self.srd(40, "s16", "s17", 448 * 3584)
        self.srd(44, "s18", "s19", 448 * 3584)
        for i in range(7):
            self.dma(1, 40, i * 8 * 3584, L_W1 + i * 1024, p["fflags"])
            self.dma(1, 44, i * 8 * 3584, L_W3 + i * 1024, p["fflags"])
            if p["fpace"] is not None:
                A(f"s_waitcnt vmcnt({p['fpace']})")
        self.fstamp(1)
        self.srd(48, "s20", "s21", 1792 * 896)
        A("s_mul_i32 s68, s77, 7168")
        for i in range(7):
            A(f"s_add_u32 s69, s68, {i*1024}")
            self.dma(2, 48, "s69", L_W2 + i * 1024)
            if p["fpace"] is not None and i % 2 == 1:
                A(f"s_waitcnt vmcnt({p['fpace']})")
        A("s_mul_i32 s68, s79, 112")
        A("v_add_u32 v8, s68, v4")
        A("v_add_u32 v9, 64, v8")
        A("s_mov_b32 s64, 0")
        A("s_mov_b32 s65, 0xffff0000")
        A(f"v_mov_b32 v10, {L_X+1792:#x}")
        A("v_cndmask_b32_e64 v9, v9, v10, s[64:65]")
        A("ds_read_b128 v[16:19], v8")
        A("ds_read_b128 v[20:23], v9")
        A("v_lshlrev_b32 v3, 7, v5")
        A("v_lshl_add_u32 v3, v6, 3, v3")
        A(f"v_add_u32 v3, {L_W1:#x}, v3")
        A("v_add_u32 v11, 4096, v3")
        A("v_add_u32 v10, 3072, v3")
        A("v_cndmask_b32_e64 v11, v11, v10, s[64:65]")
        A("s_waitcnt lgkmcnt(0)")
        for t in range(8):
            m16 = 3 << (2 * t)
            A(f"s_mov_b32 s64, {m16 | (m16 << 16):#x}")
            A(f"s_mov_b32 s65, {m16 | (m16 << 16):#x}")
            for i in range(8):
                A(f"v_cndmask_b32_e64 v{24+8*t+i}, 0, v{16+i}, s[64:65]")
        self.fstamp(2)
        A("s_waitcnt vmcnt(0)")
        self.fstamp(3)
        WB = 144
        for half in range(2):
            for tt in range(4):
                t = half * 4 + tt
                o = half * 7168 + tt * 32
                r = WB + 8 * tt
                A(f"ds_read_b64_tr_b16 v[{r}:{r+1}], v3 offset:{o}")
                A(f"ds_read_b64_tr_b16 v[{r+2}:{r+3}], v3 offset:{o+512}")
                A(f"ds_read_b64_tr_b16 v[{r+4}:{r+5}], v11 offset:{o}")
                if tt == 3:
                    A("s_waitcnt lgkmcnt(0)")
                A(f"ds_read_b64_tr_b16 v[{r+6}:{r+7}], v11 offset:{o+512}")
            A("s_waitcnt lgkmcnt(0)")
            for tt in range(4):
                t = half * 4 + tt
                r = WB + 8 * tt
                for st in range(2):
                    c = "0" if (t == 0 and st == 0) else "v[128:131]"
                    A(f"v_mfma_f32_16x16x32_bf16 v[128:131], v[{r+4*st}:{r+4*st+3}], v[{24+8*t+4*st}:{27+8*t+4*st}], {c}")
            self.nop(8)
        A("s_lshl_b32 s68, s77, 11")
        A(f"s_add_u32 s68, s68, {W_FP:#x}")
        A("v_add_u32 v8, s68, v2")
        A("v_lshrrev_b32 v9, 1, v12")
        A("v_lshlrev_b32 v9, 11, v9")
        A("v_and_b32 v10, 1, v13")
        A("v_lshl_add_u32 v9, v10, 8, v9")
        A("v_lshrrev_b32 v10, 1, v13")
        A("v_lshl_add_u32 v9, v10, 7, v9")
        A("v_lshl_add_u32 v9, v7, 4, v9")
        A("s_and_b32 s68, s77, 0xf8")
        A("s_lshl_b32 s68, s68, 11")
        A("s_and_b32 s69, s79, 1")
        A("s_lshl_b32 s69, s69, 9")
        A("s_add_u32 s68, s68, s69")
        A("s_lshr_b32 s69, s79, 1")
        A("s_lshl_b32 s69, s69, 5")
        A("s_add_u32 s68, s68, s69")
        A(f"s_add_u32 s68, s68, {W_FP:#x}")
        A("v_add_u32 v9, s68, v9")
        A("v_mov_b32 v132, v130")
        A("v_mov_b32 v133, v131")
        A("v_bitop3_b32 v130, v128, v129, s58 bitop3:0x96")
        A("v_bitop3_b32 v134, v132, v133, s58 bitop3:0x96")
        A("v_mov_b32 v131, v130")
        A("v_mov_b32 v135, v134")
        A("buffer_store_dwordx4 v[128:131], v8, s[36:39], 0 offen sc1")
        A("buffer_store_dwordx4 v[132:135], v8, s[36:39], 0 offen offset:1024 sc1")
        self.fstamp(4)
        A("v_mov_b32 v248, v9")
        self.lab("L_noffn")
        self.srd(44, "s22", "s23", 896)
        A("buffer_load_dwordx4 v[128:131], v2, s[44:47], 0 offen")
        A("s_mul_i32 s68, s56, 896")
        A(f"s_add_u32 s68, s68, {L_X:#x}")
        A("v_add_u32 v8, s68, v2")
        A("ds_read_b128 v[132:135], v8")
        A("s_waitcnt vmcnt(0) lgkmcnt(0)")
        for d in range(4):
            A(f"v_lshlrev_b32 v136, 16, v{128+d}")
            A(f"v_and_b32 v137, s62, v{128+d}")
            A(f"v_lshlrev_b32 v138, 16, v{132+d}")
            A(f"v_and_b32 v139, s62, v{132+d}")
            A("v_mul_f32 v136, v136, v138")
            A("v_mul_f32 v137, v137, v139")
            A("v_cvt_pk_bf16_f32 v137, v136, v137")
            A("v_lshlrev_b32 v136, 16, v137")
            A("v_and_b32 v137, s62, v137")
            if d == 0:
                A("v_add_f32 v140, v136, v137")
            else:
                A("v_add_f32 v140, v140, v136")
                A("v_add_f32 v140, v140, v137")
        A("s_mov_b32 s64, -1")
        A("s_mov_b32 s65, 0x00ffffff")
        A("v_cndmask_b32_e64 v140, 0, v140, s[64:65]")
        self.row_allreduce("v_add_f32", [140])
        self.swap_allreduce("v_add_f32", [140], [141], 16)
        self.swap_allreduce("v_add_f32", [140], [141], 32)
        self.round_bf16(140)
        A(f"v_mul_f32 v140, {f2u(-LOG2E):#x}, v140")
        A("v_exp_f32 v140, v140")
        self.nop(1)
        A("v_add_f32 v140, 1.0, v140")
        A("v_rcp_f32 v14, v140")
        self.nop(1)
        self.round_bf16(14)
        A("v_sub_f32 v15, 1.0, v14")
        self.round_bf16(15)
        wo_dma(p["wo1"], 28)
        A("s_cmp_eq_u32 s78, 0")
        A("s_cbranch_scc1 L_noffn2")
        loads = [f"buffer_load_dwordx4 v[{136+4*i}:{139+4*i}], v248, s[36:39], 0 offen offset:{i*1024} sc1" for i in range(2)]
        self.poll(loads, [[136, 137, 138], [140, 141, 142]], 144, sleep=8, masked=True)
        self.fstamp(5)
        A("v_mov_b32 v128, v136")
        A("v_mov_b32 v129, v137")
        A("v_mov_b32 v130, v140")
        A("v_mov_b32 v131, v141")
        self.row_allreduce("v_add_f32", [128, 129, 130, 131], steps=(8, 4, 2))
        A("v_and_b32 v8, 1, v13")
        A("v_lshrrev_b32 v9, 2, v12")
        A("v_lshl_add_u32 v8, v8, 2, v9")
        A("v_mul_u32_u24 v3, 896, v8")
        A("v_lshl_add_u32 v3, v6, 3, v3")
        A(f"v_add_u32 v3, {L_W2:#x}, v3")
        for t in range(28):
            A(f"ds_read_b64_tr_b16 v[{144+2*t}:{145+2*t}], v3 offset:{t*32}")
            if t % 14 == 13:
                A("s_waitcnt lgkmcnt(0)")
        for i in range(4):
            self.round_bf16(128 + i)
        for i in range(4):
            A(f"v_mov_b32 v{132+i}, v{128+i}")
        self.nop(2)
        for i in range(4):
            A(f"v_permlane32_swap_b32 v{128+i}, v{132+i}")
        self.nop(1)
        for i in range(4):
            A(f"v_mul_f32 v{136+i}, {f2u(-LOG2E):#x}, v{128+i}")
        for i in range(4):
            A(f"v_exp_f32 v{136+i}, v{136+i}")
        self.nop(1)
        for i in range(4):
            A(f"v_add_f32 v{136+i}, 1.0, v{136+i}")
        for i in range(4):
            A(f"v_rcp_f32 v{136+i}, v{136+i}")
        self.nop(1)
        for i in range(4):
            A(f"v_mul_f32 v{128+i}, v{128+i}, v{136+i}")
        for i in range(4):
            self.round_bf16(128 + i)
        for i in range(4):
            A(f"v_mul_f32 v{128+i}, v{128+i}, v{132+i}")
        A("v_cvt_pk_bf16_f32 v128, v128, v129")
        A("v_cvt_pk_bf16_f32 v129, v130, v131")
        for u in range(4):
            m16 = 0xf << (4 * u)
            A(f"s_mov_b32 s64, {m16 | (m16 << 16):#x}")
            A("s_mov_b32 s65, 0")
            A(f"v_cndmask_b32_e64 v{132+2*u}, 0, v128, s[64:65]")
            A(f"v_cndmask_b32_e64 v{133+2*u}, 0, v129, s[64:65]")
        self.nop(2)
        DB = 200
        for u in range(4):
            for t in range(7):
                c = "0" if u == 0 else f"v[{DB+4*t}:{DB+4*t+3}]"
                tl = 7 * u + t
                A(f"v_mfma_f32_16x16x16_bf16 v[{DB+4*t}:{DB+4*t+3}], v[{132+2*u}:{133+2*u}], v[{144+2*tl}:{145+2*tl}], {c}")
        A("s_lshl_b32 s68, s77, 12")
        A(f"s_add_u32 s68, s68, {W_BP:#x}")
        A("v_add_u32 v8, s68, v2")
        self.nop(8)
        for b in range(2):
            o = 232 + 8 * b
            for t in range(7):
                A(f"v_mov_b32 v{o+t}, v{DB+4*t+b}")
            A(f"v_bitop3_b32 v{o+7}, v{o}, v{o+1}, s58 bitop3:0x96")
            A(f"v_bitop3_b32 v{o+7}, v{o+7}, v{o+2}, v{o+3} bitop3:0x96")
            A(f"v_bitop3_b32 v{o+7}, v{o+7}, v{o+4}, v{o+5} bitop3:0x96")
            A(f"v_xor_b32 v{o+7}, v{o+7}, v{o+6}")
            if "S" not in p["abl"]:
                A(f"buffer_store_dwordx4 v[{o}:{o+3}], v8, s[36:39], 0 offen offset:{b*2048} sc1")
                A(f"buffer_store_dwordx4 v[{o+4}:{o+7}], v8, s[36:39], 0 offen offset:{b*2048+1024} sc1")
        self.fstamp(6)
        self.lab("L_noffn2")
        self.stamp(4)
        A("s_waitcnt vmcnt(0)")
        ncp = 0
        if fb:
            for kc in fb["kcp"]:
                A("s_barrier")
                self.checkpoint(ncp)
                ncp += 1
        if "b2" not in p["abl"]:
            A("s_barrier")
        if fb and fb["b2cp"]:
            self.checkpoint(ncp)
            ncp += 1
        A("v_lshlrev_b32 v8, 3, v7")
        A(f"v_add_u32 v8, {L_ST:#x}, v8")
        for w in range(4):
            A(f"ds_read_b64 v[{128+2*w}:{129+2*w}], v8 offset:{w*16}")
        A("s_lshl_b32 s68, s54, 11")
        A(f"s_add_u32 s68, s68, {W_ST:#x}")
        A("s_lshl_b32 s69, s55, 7")
        A("s_add_u32 s69, s69, s68")
        A("v_add_u32 v9, s69, v2")
        A("v_bfe_u32 v10, v0, 1, 4")
        A("v_lshlrev_b32 v10, 7, v10")
        A("v_lshl_add_u32 v10, v7, 4, v10")
        A("v_add_u32 v10, s68, v10")
        A("s_waitcnt lgkmcnt(0)")
        A("v_max3_f32 v136, v128, v130, v132")
        A("v_max_f32 v136, v136, v134")
        for w in range(4):
            A(f"v_sub_f32 v{140+w}, v{128+2*w}, v136")
        for w in range(4):
            A(f"v_exp_f32 v{140+w}, v{140+w}")
        self.nop(1)
        A("v_mul_f32 v137, v140, v129")
        for w in range(1, 4):
            A(f"v_fmac_f32 v137, v{140+w}, v{129+2*w}")
        A("v_bitop3_b32 v138, v136, v137, s58 bitop3:0x96")
        A("v_mov_b32 v139, v138")
        A("s_mov_b64 exec, 0xff")
        A("buffer_store_dwordx4 v[136:139], v9, s[36:39], 0 offen sc1")
        A("s_mov_b64 exec, -1")
        if p["b2b"]:
            A("s_barrier")
        self.poll(["buffer_load_dwordx4 v[144:147], v10, s[36:39], 0 offen sc1"], [[144, 145, 146]], 148, sleep=16, masked=True)
        A("v_mov_b32 v148, v144")
        self.row_allreduce("v_max_f32", [148], steps=(8, 4, 2))
        self.swap_allreduce("v_max_f32", [148], [149], 16)
        A("v_sub_f32 v144, v144, v148")
        A("v_exp_f32 v144, v144")
        self.nop(1)
        A("v_mul_f32 v145, v145, v144")
        self.row_allreduce("v_add_f32", [145], steps=(8, 4, 2))
        self.swap_allreduce("v_add_f32", [145], [149], 16)
        A("v_rcp_f32 v145, v145")
        for w in range(4):
            A(f"v_sub_f32 v{140+w}, v{128+2*w}, v148")
        for w in range(4):
            A(f"v_exp_f32 v{140+w}, v{140+w}")
        self.nop(1)
        for w in range(4):
            A(f"v_mul_f32 v{140+w}, v{140+w}, v145")
        A("v_lshlrev_b32 v8, 4, v7")
        A(f"v_add_u32 v8, {L_F:#x}, v8")
        A("s_mov_b64 exec, 3")
        A("ds_write_b128 v8, v[140:143]")
        A("s_mov_b64 exec, -1")
        A("s_cmp_ge_u32 s67, 64")
        A("s_cbranch_scc1 L_notcons")
        A("s_lshl_b32 s68, s56, 6")
        A("s_add_u32 s68, s68, s67")
        A("s_lshl_b32 s69, s56, 11")
        A("s_lshl_b32 s71, s67, 4")
        A("s_add_u32 s69, s69, s71")
        A(f"s_add_u32 s69, s69, {W_BP:#x}")
        A("v_lshlrev_b32 v8, 12, v0")
        A("v_add_u32 v8, s69, v8")
        A("s_mov_b32 s44, 0x40000")
        A("s_mov_b32 s45, 0x80000")
        A("s_mov_b32 s46, 0xc0000")
        A("s_mov_b32 s64, -1")
        A("s_mov_b32 s65, 0")
        loads = []
        groups = []
        for q in range(4):
            o = 128 + 8 * q
            so = f"s{43+q}" if q else "0"
            loads.append(f"buffer_load_dwordx4 v[{o}:{o+3}], v8, s[36:39], {so} offen sc1")
            loads.append(f"buffer_load_dwordx4 v[{o+4}:{o+7}], v8, s[36:39], {so} offen offset:1024 sc1")
            regs = list(range(o, o + 8))
            groups.append((regs, "s[64:65]") if q == 3 else regs)
        if "F" not in p["abl"] and "S" not in p["abl"]:
            self.poll(loads, groups, 160, sleep=8, masked=True)
        for t in range(7):
            A(f"v_cndmask_b32_e64 v{152+t}, 0, v{152+t}, s[64:65]")
        for t in range(7):
            A(f"v_add_f32 v{128+t}, v{128+t}, v{136+t}")
            A(f"v_add_f32 v{144+t}, v{144+t}, v{152+t}")
        for t in range(7):
            A(f"v_add_f32 v{128+t}, v{128+t}, v{144+t}")
        self.reduce7(list(range(128, 135)), 135)
        self.round_bf16(128)
        A("v_mul_f32 v15, v15, v128")
        self.round_bf16(15)
        A("s_lshl_b32 s69, s56, 18")
        A("s_lshr_b32 s71, s67, 4")
        A("s_lshl_b32 s71, s71, 9")
        A("s_add_u32 s69, s69, s71")
        A("s_and_b32 s71, s67, 15")
        A("s_lshl_b32 s71, s71, 4")
        A("s_add_u32 s69, s69, s71")
        A(f"s_add_u32 s69, s69, {W_H2:#x}")
        A("v_lshlrev_b32 v8, 11, v0")
        A("v_add_u32 v8, s69, v8")
        A("s_mov_b32 s66, 0x20000")
        self.srd(48, "s24", "s25", 1792)
        A("s_lshr_b32 s69, s67, 4")
        A("s_mul_i32 s69, s69, 112")
        A("s_and_b32 s71, s67, 15")
        A("s_add_u32 s69, s69, s71")
        A("s_lshl_b32 s69, s69, 1")
        A("s_mul_i32 s71, s56, 896")
        A("s_add_u32 s69, s69, s71")
        A("v_lshrrev_b32 v9, 3, v0")
        A("v_lshlrev_b32 v9, 5, v9")
        A("v_add_u32 v9, s69, v9")
        self.stamp(5)
        if fb:
            for i, vc in enumerate(fb["vcp"]):
                A("s_barrier")
                self.checkpoint(ncp + i)
        A("s_waitcnt lgkmcnt(0)")
        A("s_barrier")
        loads = []
        for q in range(2):
            o = 128 + 8 * q
            so = "s66" if q else "0"
            loads.append(f"buffer_load_dwordx4 v[{o}:{o+3}], v8, s[36:39], {so} offen sc1")
            loads.append(f"buffer_load_dwordx4 v[{o+4}:{o+7}], v8, s[36:39], {so} offen offset:256 sc1")
        if p["b4"]:
            A("s_barrier")
        self.tstamp(3)
        self.poll(loads, [list(range(128, 136)), list(range(136, 144))], 160, sleep=p["h2sleep"], masked=True)
        self.stamp(6)
        self.tstamp(5)
        for t in range(7):
            A(f"v_add_f32 v{128+t}, v{128+t}, v{136+t}")
        self.reduce7(list(range(128, 135)), 135)
        self.round_bf16(128)
        A("v_mul_f32 v128, v14, v128")
        self.round_bf16(128)
        A("v_add_f32 v128, v128, v15")
        A("v_cvt_pk_bf16_f32 v128, v128, v128")
        A("s_mov_b32 s64, 0x01010101")
        A("s_mov_b32 s65, 0x00010101")
        A("s_mov_b64 exec, s[64:65]")
        A("buffer_store_short v128, v9, s[48:51], 0 offen")
        A("s_cmp_lg_u32 s68, 0")
        A("s_cbranch_scc1 L_hend")
        A("s_mov_b64 exec, 1")
        A("v_mov_b32 v130, s76")
        A("v_mov_b32 v131, 0")
        A("buffer_store_dword v130, v131, s[36:39], 0 offen sc1")
        A("s_branch L_hend")
        self.lab("L_notcons")
        if fb:
            for i, vc in enumerate(fb["vcp"]):
                A("s_barrier")
                self.checkpoint(ncp + i)
        A("s_waitcnt lgkmcnt(0)")
        A("s_barrier")
        self.lab("L_hend")
        self.write_stamps()


if __name__ == "__main__":
    import json
    out = sys.argv[1]
    kw = json.loads(sys.argv[2]) if len(sys.argv) > 2 else {}
    open(out, "w").write(G(**kw).gen())
```

```python
import sys, math, struct, json

KNAME = "gated_mix__gqa_block_cached__glu_gated_swiglu__decode_kernel"
REF = open("gated_mix__gqa_block_cached__glu_gated_swiglu__decode.s.ref").read().split("\n")
HEADER = "\n".join(l for l in REF[:REF.index(next(x for x in REF if "@launch" in x))]) + "\n"

DOC = """;
;   unfairness between dies.  The governor compares this workgroup's progress with progress words
;   published by other workgroups and lets waves that fall behind keep more loads in flight.
"""

L_SC, L_Q, L_TAG, L_G, L_FL = 0x0000, 0x4000, 0x4400, 0x4404, 0x4408
L_F, L_PW, L_ST, L_FIN = 0x4420, 0x4460, 0x4480, 0x4500
L_X, L_PART, L_WQ, L_W2 = 0x4800, 0x5000, 0x7000, 0x7000
L_W1, L_W3, L_BP, L_AZ, L_WO = 0xA800, 0xC400, 0xE000, 0xE800, 0x10000
LDS_BYTES = 0x17000

W_Q, W_ST, W_FP, W_H1, W_H2, W_MK = 0x1000, 0x10000, 0x40000, 0x80000, 0x100000, 0x180000
WS_USED = 0x200000
MKS = 4352

LOG2E = 1.4426950408889634


def f2u(f):
    return struct.unpack("<I", struct.pack("<f", f))[0]


class G:
    def __init__(self, **p):
        self.L = []
        self.p = dict(stamps=False, prof=False, tst=False, spin=0x40000, cap0=6, lo=5, hi=7, init=0x2492,
                      th=[-32, -8, 16, 40], masks=[0xffff, 0x7777, 0x5555, 0x2492, 0], I=8, si=4, np=8, R=8,
                      wo1=3, fpace=2, flagit=8, cpref=False, b0=True, sl=4)
        self.p.update(p)
        self.nlab = 0

    def A(self, s):
        self.L.append("    " + s)

    def C(self, s):
        self.L.append("    ; " + s)

    def lab(self, name):
        self.L.append(name + ":")

    def newlab(self, base):
        self.nlab += 1
        return f"L_{base}{self.nlab}"

    def nop(self, n):
        if n > 0:
            self.A(f"s_nop {n-1}")

    def stamp(self, k):
        if self.p["stamps"] and not (self.p["tst"] and k not in (0, 7)):
            self.A(f"s_memrealtime s[{80+2*k}:{81+2*k}]")

    def tstamp(self, k):
        if self.p["tst"]:
            self.A(f"s_memrealtime s[{80+2*k}:{81+2*k}]")

    def prof(self):
        if self.p["prof"]:
            A = self.A
            A("s_memrealtime s[96:97]")
            A("s_waitcnt lgkmcnt(0)")
            A("v_writelane_b32 v61, s96, m0")
            A("s_add_u32 m0, m0, 1")

    def write_stamps(self):
        if not self.p["stamps"]:
            return
        A = self.A
        self.stamp(7)
        A("s_mov_b64 exec, -1")
        A("s_mul_i32 s68, s2, 5")
        A("s_add_u32 s68, s68, s3")
        A("s_lshl_b32 s69, s68, 4")
        A("s_add_u32 s69, s69, 0x20000000")
        A("s_lshl_b32 s68, s68, 7")
        A("s_add_u32 s68, s68, 0x21000000")
        A("s_waitcnt vmcnt(0) lgkmcnt(0)")
        if self.p["prof"]:
            A("s_sub_u32 s71, s69, 0x20000000")
            A("s_lshl_b32 s71, s71, 4")
            A("s_add_u32 s71, s71, 0x22000000")
            A("v_lshlrev_b32 v12, 2, v0")
            A("v_add_u32 v12, s71, v12")
            A("global_store_dword v12, v61, s[28:29]")
            A("s_waitcnt vmcnt(0)")
        A("v_mov_b32 v12, s69")
        A("v_mov_b32 v13, s68")
        for i in range(16):
            A(f"v_mov_b32 v{16+i}, s{80+i}")
        A("v_mov_b32 v32, s80"); A("v_mov_b32 v33, s81"); A("v_mov_b32 v34, s94"); A("v_mov_b32 v35, s95")
        A("s_mov_b64 exec, 1")
        A("global_store_dwordx4 v12, v[32:35], s[28:29]")
        for i in range(4):
            A(f"global_store_dwordx4 v13, v[{16+4*i}:{19+4*i}], s[28:29] offset:{16*i}")
        A("s_waitcnt vmcnt(0)")

    def row_allreduce(self, op, regs, steps=(8, 4, 2, 1)):
        self.nop(2)
        for k, st in enumerate(steps):
            for r in regs:
                self.A(f"{op}_dpp v{r}, v{r}, v{r} row_ror:{st} row_mask:0xf bank_mask:0xf")
            if len(regs) < 3 and k + 1 < len(steps):
                self.nop(3 - len(regs))

    def swap_allreduce(self, op, regs, tmps, which):
        A = self.A
        for r, t in zip(regs, tmps):
            A(f"v_mov_b32 v{t}, v{r}")
        self.nop(2)
        for r, t in zip(regs, tmps):
            A(f"v_permlane{which}_swap_b32 v{r}, v{t}")
        self.nop(1)
        for r, t in zip(regs, tmps):
            A(f"{op} v{r}, v{r}, v{t}")

    def round_bf16(self, r):
        self.A(f"v_cvt_pk_bf16_f32 v{r}, v{r}, v{r}")
        self.A(f"v_and_b32 v{r}, s62, v{r}")

    def srd(self, d, lo, hi, nbytes):
        A = self.A
        A(f"s_mov_b32 s{d}, {lo}")
        A(f"s_mov_b32 s{d+1}, {hi}")
        A(f"s_mov_b32 s{d+2}, {nbytes:#x}")
        A(f"s_mov_b32 s{d+3}, 0x00020000")

    def perm_consts(self):
        for k in range(3):
            self.A(f"s_mov_b32 s{48+k}, {0x07060501 + k:#x}")
        self.A("s_mov_b32 s46, 0x04000c0c")
        self.A("s_mov_b32 s47, 0x0706000c")

    def pack4(self, d, s):
        A = self.A
        for k in range(3):
            A(f"v_perm_b32 v{d+k}, v{s+k}, v{s+3}, s{48+k}")
        A(f"v_bitop3_b32 v{d+3}, v{d}, v{d+1}, v{d+2} bitop3:0x96")
        A(f"v_xor_b32 v{d+3}, s58, v{d+3}")

    def unpack4(self, units):
        for u in units:
            self.A(f"v_perm_b32 v{u+3}, v{u+2}, v{u+1}, s46")
        for u in units:
            self.A(f"v_perm_b32 v{u+3}, v{u+3}, v{u}, s47")

    def poll(self, loads, groups, tmp, sleep=0, pre=False):
        A = self.A
        lp, done = self.newlab("poll"), self.newlab("pdone")
        A(f"s_mov_b32 s70, {self.p['spin']:#x}")
        if pre:
            ent = self.newlab("pent")
            A(f"s_branch {ent}")
        self.lab(lp)
        for l in loads:
            A(l)
        if pre:
            self.lab(ent)
        A("s_waitcnt vmcnt(0)")
        for gi, regs in enumerate(groups):
            t = tmp + gi
            A(f"v_bitop3_b32 v{t}, v{regs[0]}, v{regs[1]}, v{regs[2]} bitop3:0x96")
            if len(regs) == 4:
                A(f"v_xor_b32 v{t}, v{t}, v{regs[3]}")
            A(f"v_cmp_ne_u32_e64 {'s[74:75]' if gi else 's[72:73]'}, s58, v{t}")
            if gi:
                A("s_or_b64 s[72:73], s[72:73], s[74:75]")
        A("s_cmp_eq_u64 s[72:73], 0")
        A(f"s_cbranch_scc1 {done}")
        A("s_mov_b64 exec, s[72:73]")
        if sleep:
            A(f"s_sleep {sleep}")
        A("s_sub_u32 s70, s70, 1")
        A("s_cmp_lg_u32 s70, 0")
        A(f"s_cbranch_scc1 {lp}")
        self.lab(done)
        A("s_mov_b64 exec, -1")

    def dma(self, vaddr, srd, soff, ldsaddr, fl="nt"):
        A = self.A
        A(f"s_mov_b32 m0, {ldsaddr:#x}")
        if isinstance(soff, int):
            A(f"s_mov_b32 s71, {soff:#x}")
            so = "s71"
        else:
            base, off = soff
            A(f"s_add_u32 s71, {base}, {off:#x}")
            so = "s71"
        A(f"buffer_load_dwordx4 v{vaddr}, s[{srd}:{srd+3}], {so} offen {fl} lds")

    def consumer_id(self, dst, tmp):
        A = self.A
        A(f"s_lshr_b32 {dst}, s55, 1")
        A(f"s_lshl_b32 {dst}, {dst}, 2")
        A(f"s_and_b32 {tmp}, s55, 1")
        A(f"s_add_u32 {dst}, {dst}, {tmp}")
        A(f"s_lshl_b32 {tmp}, s57, 1")
        A(f"s_add_u32 {dst}, {dst}, {tmp}")
        A("s_cmp_ge_u32 s57, 2")
        A(f"s_cselect_b32 {dst}, 28, {dst}")

    def gen(self):
        A, p, L = self.A, self.p, self.L
        L.append(HEADER + f"; @launch grid=(256,1,1) block=(384,1,1) lds={LDS_BYTES}")
        L.append(DOC.rstrip("\n"))
        L.append('.amdgcn_target "amdgcn-amd-amdhsa--gfx950"')
        L.append(".text")
        L.append(f".globl {KNAME}")
        L.append(".p2align 8")
        L.append(f".type {KNAME},@function")
        self.lab(KNAME)
        A("s_cmp_ge_u32 s2, 256")
        A("s_cbranch_scc1 L_end")
        self.C("s[4:5] x  s[6:7] K  s[8:9] V  s[10:11] wq  s[12:13] wo  s[16:17] w1  s[18:19] w3")
        self.C("s[20:21] w2  s[22:23] gate_w  s[24:25] out  s[28:29] ws")
        A("s_load_dwordx16 s[4:19], s[0:1], 0")
        A("s_load_dwordx8 s[20:27], s[0:1], 64")
        A("s_load_dwordx2 s[28:29], s[0:1], 96")
        self.stamp(0)
        A("v_lshrrev_b32 v1, 6, v0")
        A("v_and_b32 v0, 63, v0")
        A("v_readfirstlane_b32 s3, v1")
        self.C("s52 2-MiB region, s53 half, s54 group (b*8+hkv), s55 index in group, s56 b, s57 hkv")
        A("s_and_b32 s52, s2, 127")
        A("s_lshr_b32 s53, s2, 7")
        A("s_lshr_b32 s54, s52, 3")
        A("s_and_b32 s55, s52, 7")
        A("s_lshl_b32 s55, s55, 1")
        A("s_add_u32 s55, s55, s53")
        A("s_lshr_b32 s56, s54, 3")
        A("s_and_b32 s57, s54, 7")
        A("s_mov_b32 s62, 0xffff0000")
        A("v_and_b32 v12, 15, v0")
        A("v_lshrrev_b32 v13, 4, v0")
        A("s_cmp_ge_u32 s3, 4")
        A("s_cbranch_scc1 L_notstream")
        keep = self.L
        self.L = []
        self.stream()
        body = self.L
        self.L = keep
        cut = body.index("@CUT")
        self.L.extend(body[:cut])
        A("s_branch L_stream")
        self.lab("L_notstream")
        A("s_cmp_lg_u32 s3, 5")
        A("s_cbranch_scc1 L_helper")
        if p["b0"]:
            A("s_barrier")
        A("s_branch L_gov")
        self.lab("L_helper")
        self.helper()
        A("s_endpgm")
        self.lab("L_gov")
        self.governor()
        A("s_endpgm")
        self.lab("L_stream")
        self.L.extend(body[cut + 1:])
        self.lab("L_end")
        A("s_endpgm")
        L = self.L
        L.append('.section .rodata,"a"')
        L.append(".p2align 6")
        L.append(f".amdhsa_kernel {KNAME}")
        L.append("  .amdhsa_next_free_vgpr 256")
        L.append("  .amdhsa_next_free_sgpr 102")
        L.append("  .amdhsa_accum_offset 256")
        L.append("  .amdhsa_group_segment_fixed_size 0")
        L.append("  .amdhsa_kernarg_size 104")
        L.append("  .amdhsa_user_sgpr_count 2")
        L.append("  .amdhsa_user_sgpr_kernarg_segment_ptr 1")
        L.append("  .amdhsa_system_sgpr_workgroup_id_x 1")
        L.append("  .amdhsa_float_denorm_mode_32 3")
        L.append(".end_amdhsa_kernel")
        return "\n".join(L) + "\n"

    def kreg(self, rp, s, j):
        return 128 + ((rp * 2 + s) * 4 + j) * 4

    def vreg(self, rp, s, j):
        return 64 + ((rp * 2 + s) * 4 + j) * 4

    def ldk(self, rp, s, j):
        r = self.kreg(rp, s, j)
        self.A(f"buffer_load_dwordx4 v[{r}:{r+3}], v1, s[32:35], {'s61' if s else 's60'} offen offset:{j*128} nt")

    def ldv(self, rp, s, j, s0="s60", s1="s61"):
        r = self.vreg(rp, s, j)
        self.A(f"buffer_load_dwordx4 v[{r}:{r+3}], v2, s[40:43], {s1 if s else s0} offen offset:{j*1024} nt")

    def window(self, n):
        A, p = self.A, self.p
        sk = self.newlab("w")
        A(f"s_waitcnt vmcnt({p['hi']-1})")
        A(f"s_bitcmp1_b32 s79, {n % 16}")
        A(f"s_cbranch_scc0 {sk}")
        A(f"s_waitcnt vmcnt({p['lo']-1})")
        self.lab(sk)

    def fine(self):
        self.A("v_add_u32 v48, 8, v48")
        self.A("ds_write_b32 v49, v48")

    def slot_hook(self, waited=False):
        A = self.A
        if not waited:
            A("s_waitcnt lgkmcnt(0)")
        A("v_readfirstlane_b32 s79, v62")
        A("v_add_u32 v46, 32, v46")
        A("v_mov_b32 v48, v46")
        A("ds_write_b32 v49, v46")
        A("ds_read_b32 v62, v49 offset:16")

    def stream(self):
        A, C, p = self.A, self.C, self.p
        cap0 = p["cap0"]
        assert p["hi"] <= 8
        C("K lane offset: key (n>>1), 16-byte chunk (n&1)*4+g of a 128-byte segment")
        A("v_lshrrev_b32 v14, 1, v12")
        A("v_lshlrev_b32 v1, 9, v14")
        A("v_and_b32 v15, 1, v12")
        A("v_lshl_or_b32 v1, v15, 6, v1")
        A("v_lshl_or_b32 v1, v13, 4, v1")
        A("s_lshl_b32 s66, s53, 2")
        A("s_add_u32 s66, s66, s3")
        A("s_lshl_b32 s66, s66, 13")
        A("s_lshl_b32 s67, s52, 21")
        A("s_mov_b32 s60, s66")
        A("s_mov_b32 s34, 0x200000")
        A("s_mov_b32 s35, 0x00020000")
        A("s_waitcnt lgkmcnt(0)")
        A("s_add_u32 s32, s6, s67")
        A("s_addc_u32 s33, s7, 0")
        if p["b0"]:
            A("s_barrier")
        n = 0
        for rp in range(4):
            A("s_add_u32 s61, s60, 4096")
            for s in range(2):
                for j in range(4):
                    if n >= cap0:
                        A(f"s_waitcnt vmcnt({cap0-1})")
                    self.ldk(rp, s, j)
                    n += 1
                    if n == cap0:
                        self.L.append("@CUT")
                        self.stream_setup()
            A("s_add_u32 s60, s60, 0x10000")
        self.stamp(1)
        A("s_barrier")
        C("q as MFMA A operand (rows: head, half-segment variant), tag")
        for j in range(4):
            A(f"ds_read_b128 v[{16+4*j}:{19+4*j}], v12 offset:{j*128}")
        A("ds_read_b32 v13, v63")
        A("s_mov_b32 s59, 0")
        A(f"s_mov_b32 s79, {p['init']:#x}")
        A("v_mov_b32 v62, s79")
        A("s_waitcnt lgkmcnt(0)")
        A("v_readfirstlane_b32 s58, v13")
        self.stamp(2)

        def kset(rp, s, mid):
            d = 32 + 4 * s
            for j in range(4):
                r = self.kreg(rp, s, j)
                c = "0" if j == 0 else f"v[{d}:{d+3}]"
                A(f"v_mfma_f32_16x16x32_bf16 v[{d}:{d+3}], v[{16+4*j}:{19+4*j}], v[{r}:{r+3}], {c}")
            self.nop(max(0, 8 - mid()))
            t = 40 + 2 * s
            A(f"v_add_f32_dpp v{t}, v{d+1}, v{d} quad_perm:[1,1,3,3] row_mask:0xf bank_mask:0xf")
            A(f"v_add_f32_dpp v{t+1}, v{d+3}, v{d+2} quad_perm:[1,1,3,3] row_mask:0xf bank_mask:0xf")
            if s == 1:
                A("s_mov_b64 exec, 0x5555")
                A(f"ds_write_b128 v4, v[40:43] offset:{rp*128}")
                A("s_mov_b64 exec, -1")

        if p["prof"]:
            A("s_mov_b32 m0, 0")
            A("v_mov_b32 v61, 0")
        C("---------------- K loop: 64 keys per trip, ring of 32 loads")
        self.lab("L_kloop")
        n = 0
        for rp in range(4):
            self.prof()
            A("s_add_u32 s61, s60, 4096")
            for s in range(2):
                def mid():
                    nonlocal n
                    for j in range(4):
                        self.window(n)
                        self.ldk(rp, s, j)
                        if n % 2 == 1 and n % 8 != 3:
                            self.fine()
                        n += 1
                    if s == 0:
                        self.slot_hook()
                    return 8
                kset(rp, s, mid)
            A("s_add_u32 s60, s60, 0x10000")
        A("v_add_u32 v4, 512, v4")
        A("s_add_u32 s59, s59, 1")
        A("s_cmp_lt_u32 s59, 7")
        A("s_cbranch_scc1 L_kloop")
        C("---------------- last 64 keys of K; the first 16 V loads are issued meanwhile")
        A("s_mov_b32 s60, s66")
        A("s_add_u32 s61, s60, 4096")
        A("s_add_u32 s68, s60, 0x10000")
        A("s_add_u32 s69, s60, 0x11000")
        vseq = [(rp, s, j) for rp in range(2) for s in range(2) for j in range(4)]
        nv = 0

        def vissue(paced):
            nonlocal nv
            rp, s, j = vseq[nv]
            if paced:
                A(f"s_waitcnt vmcnt({cap0-1})")
            self.ldv(rp, s, j, *(("s68", "s69") if rp else ()))
            nv += 1
        for rp in range(4):
            for s in range(2):
                idx = rp * 2 + s
                def mid():
                    if idx < 5:
                        vissue(True)
                        if idx == 2:
                            self.slot_hook()
                        return 2
                    if idx == 5:
                        while nv < cap0:
                            vissue(True)
                        A(f"s_waitcnt vmcnt({nv})")
                        while nv < 16:
                            vissue(False)
                        return 8
                    return 0
                kset(rp, s, mid)
        A("s_add_u32 s60, s60, 0x20000")
        self.stamp(3)
        C("---------------- softmax numerators of this wave's 512 keys x 2 heads")
        S = 128
        A("s_waitcnt lgkmcnt(0)")
        for i in range(4):
            A(f"ds_read_b128 v[{S+4*i}:{S+4*i+3}], v14 offset:{i*1024}")
        A(f"s_mov_b32 s63, {f2u(LOG2E/16):#x}")
        A("s_waitcnt lgkmcnt(0)")
        self.slot_hook(True)
        for i in range(8):
            a, b = S + 2 * i, S + 2 * i + 1
            A(f"v_cvt_pk_bf16_f32 v{b}, v{a}, v{b}")
            A(f"v_lshlrev_b32 v{a}, 16, v{b}")
            A(f"v_and_b32 v{b}, s62, v{b}")
        m, l, T2 = [148, 150], [149, 151], [152, 153]
        for h in range(2):
            A(f"v_max3_f32 v{m[h]}, v{S+h}, v{S+2+h}, v{S+4+h}")
            A(f"v_max3_f32 v{m[h]}, v{m[h]}, v{S+6+h}, v{S+8+h}")
            A(f"v_max3_f32 v{m[h]}, v{m[h]}, v{S+10+h}, v{S+12+h}")
            A(f"v_max_f32 v{m[h]}, v{m[h]}, v{S+14+h}")
        self.row_allreduce("v_max_f32", m)
        self.swap_allreduce("v_max_f32", m, T2, 16)
        self.swap_allreduce("v_max_f32", m, T2, 32)
        for h in range(2):
            A(f"v_mul_f32 v{m[h]}, s63, v{m[h]}")
        for i in range(16):
            A(f"v_fma_f32 v{S+i}, v{S+i}, s63, -v{m[i&1]}")
        for i in range(16):
            A(f"v_exp_f32 v{S+i}, v{S+i}")
        self.nop(1)
        for i in range(4):
            A(f"ds_write_b128 v14, v[{S+4*i}:{S+4*i+3}] offset:{i*1024}")
        for h in range(2):
            A(f"v_add_f32 v{l[h]}, v{S+h}, v{S+2+h}")
            for i in range(2, 8):
                A(f"v_add_f32 v{l[h]}, v{l[h]}, v{S+2*i+h}")
        A("s_waitcnt lgkmcnt(0)")
        PB = 160
        for j in range(4):
            A(f"ds_read_b128 v[{PB+4*j}:{PB+4*j+3}], v5 offset:{j*32}")
        self.row_allreduce("v_add_f32", l)
        self.swap_allreduce("v_add_f32", l, T2, 16)
        self.swap_allreduce("v_add_f32", l, T2, 32)
        A("s_mov_b64 exec, 1")
        A("ds_write_b128 v15, v[148:151]")
        A("s_mov_b64 exec, -1")
        AC = 16
        for i in range(16):
            A(f"v_mov_b32 v{AC+i}, 0")
        A("s_mov_b32 s59, 0")
        A("s_waitcnt lgkmcnt(0)")
        A("s_barrier")
        A("s_waitcnt vmcnt(15)")
        self.stamp(4)

        def vbody(last):
            n = 0
            for rp in range(2):
                P, Pn = PB + 16 * rp, PB + 16 * (1 - rp)
                self.prof()
                if not last:
                    A("s_add_u32 s61, s60, 4096")
                A("s_waitcnt lgkmcnt(0)")
                if not last:
                    self.slot_hook(True)
                if not (last and rp == 1):
                    for j in range(4):
                        A(f"ds_read_b128 v[{Pn+4*j}:{Pn+4*j+3}], v5 offset:{(rp+1)*128 + j*32}")
                for s in range(2):
                    for j in range(4):
                        r = self.vreg(rp, s, j)
                        if last and 15 - n < p["hi"]:
                            A(f"s_waitcnt vmcnt({15 - n})")
                        for d in range(4):
                            A(f"v_lshlrev_b32 v{52+2*d}, 16, v{r+d}")
                            A(f"v_and_b32 v{53+2*d}, s62, v{r+d}")
                        pp = P + 4 * j + 2 * s
                        for h in range(2):
                            for d in range(4):
                                a = AC + h * 8 + 2 * d
                                A(f"v_pk_fma_f32 v[{a}:{a+1}], v[{52+2*d}:{53+2*d}], v[{pp}:{pp+1}], v[{a}:{a+1}] op_sel:[0,{h},0] op_sel_hi:[1,{h},1]")
                        if not last:
                            self.window(n)
                            self.ldv(rp, s, j)
                            if n % 2 == 1 and n % 8 != 7:
                                self.fine()
                        n += 1
                if not last:
                    A("s_add_u32 s60, s60, 0x10000")
        C("---------------- V loop: 32 keys per trip, ring of 16 loads")
        self.lab("L_vloop")
        vbody(False)
        A("v_add_u32 v5, 256, v5")
        A("s_add_u32 s59, s59, 1")
        A("s_cmp_lt_u32 s59, 15")
        A("s_cbranch_scc1 L_vloop")
        vbody(True)
        self.stamp(5)
        self.tstamp(1)
        C("---------------- tail: wave partials -> LDS -> normalised workgroup partial -> hop 1")
        self.nop(2)
        for e in range(8):
            A(f"v_permlane32_swap_b32 v{AC+e}, v{AC+8+e}")
        for e in range(8):
            A(f"v_add_f32 v{AC+e}, v{AC+e}, v{AC+8+e}")
        A(f"ds_write_b128 v9, v[{AC}:{AC+3}]")
        A(f"ds_write_b128 v9, v[{AC+4}:{AC+7}] offset:16")
        A("s_waitcnt lgkmcnt(0)")
        self.tstamp(2)
        A("s_barrier")
        self.tstamp(3)
        for w in range(4):
            A(f"ds_read_b128 v[{64+4*w}:{67+4*w}], v10 offset:{w*2048}")
        A("ds_read_b128 v[88:91], v60")
        A("s_waitcnt lgkmcnt(0)")
        for k in range(2):
            A(f"v_pk_mul_f32 v[{80+2*k}:{81+2*k}], v[{64+2*k}:{65+2*k}], v[88:89] op_sel:[0,0] op_sel_hi:[1,0]")
        for w in range(1, 4):
            for k in range(2):
                f, h = 88 + (w & 2), w & 1
                A(f"v_pk_fma_f32 v[{80+2*k}:{81+2*k}], v[{64+4*w+2*k}:{65+4*w+2*k}], v[{f}:{f+1}], v[{80+2*k}:{81+2*k}] op_sel:[0,{h},0] op_sel_hi:[1,{h},1]")
        self.pack4(92, 80)
        A("s_mov_b32 exec_hi, 0")
        A("buffer_store_dwordx4 v[92:95], v6, s[36:39], 0 offen sc1")
        A("s_mov_b32 exec_hi, -1")
        self.tstamp(4)
        A("s_barrier")
        A("ds_read_b128 v[100:103], v3")
        A(f"ds_read_b32 v104, v63 offset:{L_G - L_TAG}")
        A("s_waitcnt lgkmcnt(0)")
        A("s_barrier")
        self.stamp(6)
        self.tstamp(5)
        C("o slice (masked per tile) x wo tiles; lane (n,g) gets columns 16n+4g..+3 of this wave's 112")
        def rd(t):
            A(f"ds_read_b64_tr_b16 v[{128+4*t}:{129+4*t}], v11 offset:{t*32}")
            A(f"ds_read_b64_tr_b16 v[{130+4*t}:{131+4*t}], v11 offset:{t*32+4*896}")
            A(f"ds_read_b128 v[{160+4*t}:{163+4*t}], v7 offset:{(6-t)*64}")
        def mm(t):
            c = "0" if t == 0 else "v[96:99]"
            A(f"v_mfma_f32_16x16x32_bf16 v[96:99], v[{128+4*t}:{131+4*t}], v[{160+4*t}:{163+4*t}], {c}")
        for t in range(5):
            rd(t)
        A("s_waitcnt lgkmcnt(9)")
        mm(0); mm(1)
        rd(5); rd(6)
        for t in range(2, 7):
            A(f"s_waitcnt lgkmcnt({(6-t)*3})")
            mm(t)
        self.nop(8)
        for k in range(4):
            A(f"v_fma_f32 v{96+k}, v{96+k}, v104, v{100+k}")
        self.pack4(108, 96)
        A("s_mov_b64 exec, s[64:65]")
        A("buffer_store_dwordx4 v[108:111], v8, s[36:39], 0 offen sc1")
        A("s_mov_b64 exec, -1")
        self.tstamp(6)
        C("hop 2: owners of an output tile sum the 128 slices (32 per wave)")
        A("s_cmp_ge_u32 s44, 28")
        A("s_cbranch_scc1 L_send")
        self.poll(["buffer_load_dwordx4 v[112:115], v34, s[36:39], 0 offen sc1",
                   "buffer_load_dwordx4 v[116:119], v34, s[36:39], s45 offen sc1"],
                  [[112, 113, 114, 115], [116, 117, 118, 119]], 120)
        self.unpack4([112, 116])
        for k in range(4):
            A(f"v_add_f32 v{112+k}, v{112+k}, v{116+k}")
        self.nop(2)
        A("v_permlane32_swap_b32 v112, v114")
        A("v_permlane32_swap_b32 v113, v115")
        self.nop(1)
        A("v_add_f32 v112, v112, v114")
        A("v_add_f32 v113, v113, v115")
        self.nop(2)
        A("v_permlane16_swap_b32 v112, v113")
        self.nop(1)
        A("v_add_f32 v112, v112, v113")
        self.row_allreduce("v_add_f32", [112], steps=(8, 4))
        A("ds_write_b32 v35, v112")
        A("s_waitcnt lgkmcnt(0)")
        self.lab("L_send")
        if p["stamps"]:
            A("s_barrier")
        self.write_stamps()
        A("s_endpgm")

    def stream_setup(self):
        A, C = self.A, self.C
        C("addresses for the later phases")
        self.srd(36, "s28", "s29", WS_USED)
        A("s_add_u32 s40, s8, s67")
        A("s_addc_u32 s41, s9, 0")
        A("s_mov_b32 s42, 0x200000")
        A("s_mov_b32 s43, 0x00020000")
        self.perm_consts()
        A("s_mov_b32 s64, 0x00ff00ff")
        A("s_mov_b32 s65, 0x00ff00ff")
        A("s_lshl_b32 s68, s3, 12")
        A("v_lshlrev_b32 v4, 4, v14")
        A("v_add_u32 v4, s68, v4")
        A("v_lshlrev_b32 v2, 4, v0")
        A("v_lshrrev_b32 v50, 5, v0")
        A("v_lshlrev_b32 v5, 4, v50")
        A("v_add_u32 v5, s68, v5")
        A("s_lshl_b32 s69, s3, 11")
        A(f"s_add_u32 s69, s69, {L_PART:#x}")
        A("v_lshlrev_b32 v9, 5, v0")
        A("v_add_u32 v9, s69, v9")
        A("v_and_b32 v50, 31, v0")
        A("v_lshlrev_b32 v10, 4, v50")
        A("s_lshl_b32 s69, s3, 9")
        A(f"s_add_u32 s69, s69, {L_PART:#x}")
        A("v_add_u32 v10, s69, v10")
        A("s_lshr_b32 s69, s3, 1")
        A("s_lshl_b32 s69, s69, 4")
        A(f"s_add_u32 s69, s69, {L_F:#x}")
        A("v_mov_b32 v60, s69")
        A("v_lshrrev_b32 v6, 3, v50")
        A("v_lshlrev_b32 v6, 11, v6")
        A("v_and_b32 v50, 7, v0")
        A("v_lshl_add_u32 v6, v50, 4, v6")
        A("s_lshl_b32 s69, s54, 4")
        A("s_lshl_b32 s71, s3, 2")
        A("s_add_u32 s69, s69, s71")
        A("s_lshl_b32 s69, s69, 11")
        A("s_lshl_b32 s71, s55, 7")
        A("s_add_u32 s69, s69, s71")
        A(f"s_add_u32 s69, s69, {W_H1:#x}")
        A("v_add_u32 v6, s69, v6")
        A("v_lshlrev_b32 v50, 6, v12")
        A("v_lshl_add_u32 v50, v13, 4, v50")
        A(f"v_add_u32 v7, {L_AZ:#x}, v50")
        A("s_lshl_b32 s69, s54, 4")
        A("s_add_u32 s69, s69, s55")
        A("s_lshl_b32 s69, s69, 11")
        A("s_lshl_b32 s71, s3, 9")
        A("s_add_u32 s69, s69, s71")
        A(f"s_add_u32 s69, s69, {W_H2:#x}")
        A("v_add_u32 v8, s69, v50")
        A("s_mul_i32 s69, s3, 448")
        A(f"s_add_u32 s69, s69, {L_BP:#x}")
        A("v_add_u32 v3, s69, v50")
        A("v_lshrrev_b32 v50, 2, v12")
        A("v_lshl_add_u32 v50, v13, 3, v50")
        A("v_mul_u32_u24 v11, 896, v50")
        A("v_and_b32 v50, 3, v12")
        A("v_lshl_add_u32 v11, v50, 3, v11")
        A("s_mul_i32 s69, s3, 224")
        A(f"s_add_u32 s69, s69, {L_WO:#x}")
        A("v_add_u32 v11, s69, v11")
        self.consumer_id("s44", "s69")
        A("s_mul_i32 s69, s44, 37")
        A("s_lshr_b32 s69, s69, 8")
        A("s_add_u32 s69, s69, s44")
        A("s_lshl_b32 s69, s69, 6")
        A("s_lshl_b32 s71, s56, 18")
        A("s_add_u32 s69, s69, s71")
        A("s_lshl_b32 s71, s3, 16")
        A("s_add_u32 s69, s69, s71")
        A(f"s_add_u32 s69, s69, {W_H2:#x}")
        A("v_lshrrev_b32 v44, 2, v0")
        A("v_lshlrev_b32 v44, 11, v44")
        A("v_lshl_add_u32 v44, v50, 4, v44")
        A("v_add_u32 v44, s69, v44")
        A("s_mov_b32 s45, 0x8000")
        A("v_lshl_add_u32 v45, v50, 2, v13")
        A("v_lshlrev_b32 v45, 4, v45")
        A("s_lshl_b32 s69, s3, 2")
        A(f"s_add_u32 s71, s69, {L_FIN:#x}")
        A("v_add_u32 v45, s71, v45")
        A(f"s_add_u32 s71, s69, {L_PW:#x}")
        A("v_mov_b32 v49, s71")
        A("v_mov_b32 v46, 0")
        A("v_mov_b32 v48, 0")
        A("v_and_b32 v50, 1, v14")
        A("v_lshlrev_b32 v12, 9, v50")
        A("v_lshl_or_b32 v12, v15, 6, v12")
        A("v_lshl_or_b32 v12, v13, 4, v12")
        A(f"v_add_u32 v12, {L_Q:#x}, v12")
        A(f"v_mov_b32 v63, {L_TAG:#x}")
        A("v_add_u32 v14, s68, v2")
        A("s_lshl_b32 s69, s3, 4")
        A(f"s_add_u32 s69, s69, {L_ST:#x}")
        A("v_mov_b32 v15, s69")

    def governor(self):
        A, C, p = self.A, self.C, self.p
        I, SI, NP, R = p["I"], p["si"], p["np"], p["R"]
        C("---------------- governor: progress exchange -> per-wave window masks (speed only)")
        A("s_setprio 2")
        A("v_mov_b32 v8, 0")
        A("v_and_b32 v13, 3, v0")
        A("v_lshlrev_b32 v13, 2, v13")
        A(f"v_add_u32 v13, {L_PW:#x}, v13")
        A("ds_write_b32 v13, v8")
        A(f"v_mov_b32 v1, {p['init']:#x}")
        A("ds_write_b32 v13, v1 offset:16")
        A(f"v_mov_b32 v6, {L_TAG:#x}")
        A("s_and_b32 s66, s2, 7")
        A("s_lshr_b32 s67, s2, 3")
        for j in range(NP):
            A(f"s_add_u32 s68, s66, {j + (j >> 3) * 3}")
            A("s_and_b32 s68, s68, 7")
            A(f"s_add_u32 s69, s67, {3*j}")
            A(f"s_and_b32 s69, s69, {R-1}")
            A("s_lshl_b32 s69, s69, 3")
            A("s_or_b32 s68, s68, s69")
            A(f"s_mul_i32 s{32+j}, s68, {MKS}")
            A(f"s_add_u32 s{32+j}, s{32+j}, {W_MK:#x}")
        A("v_lshlrev_b32 v7, 4, v0")
        A("v_add_u32 v7, s32, v7")
        A("s_waitcnt lgkmcnt(0)")
        self.srd(48, "s28", "s29", WS_USED)
        A("s_barrier")
        A("ds_read_b32 v1, v6")
        A("s_waitcnt lgkmcnt(0)")
        A("v_readfirstlane_b32 s58, v1")
        A("s_mov_b64 exec, 0xff")
        A(f"s_and_b32 s59, s67, {I-1}")
        A("s_add_u32 s72, s66, s67")
        A("s_mov_b32 s60, 0")
        A("s_mov_b32 s61, 0")
        A("s_mov_b32 s64, 0")
        A(f"s_mov_b32 s70, {p['spin']*64:#x}")
        self.lab("L_gl")
        A("s_sub_u32 s70, s70, 1")
        A("s_cmp_eq_u32 s70, 0")
        A("s_cbranch_scc1 L_gx")
        A(f"s_sleep {p['sl']}")
        A("ds_read_b32 v12, v13")
        A("s_waitcnt lgkmcnt(0)")
        A("v_readlane_b32 s65, v12, 1")
        A("s_lshr_b32 s65, s65, 5")
        A("s_cmp_eq_u32 s65, s60")
        A("s_cbranch_scc1 L_gl")
        A("s_mov_b32 s60, s65")
        A("s_add_u32 s66, s60, s59")
        A(f"s_lshr_b32 s66, s66, {int(math.log2(I))}")
        A("s_cmp_eq_u32 s66, s61")
        A("s_cbranch_scc1 L_gnp")
        A("s_mov_b32 s61, s66")
        A(f"s_cmp_ge_u32 s67, {R}")
        A("s_cbranch_scc1 L_gnp")
        A("s_add_u32 s66, s66, s58")
        for i in range(4):
            A(f"v_mov_b32 v{8+i}, s66")
        A("buffer_store_dwordx4 v[8:11], v7, s[48:51], 0 offen sc1")
        self.lab("L_gnp")
        A("s_cmp_ge_u32 s60, 58")
        A("s_cbranch_scc1 L_gx")
        A("s_cmp_lt_u32 s60, 29")
        A("s_cbranch_scc1 L_gnb")
        A("s_cmp_lg_u32 s64, 0")
        A("s_cbranch_scc1 L_gnb")
        A("s_mov_b32 s64, 1")
        A("s_barrier")
        A("s_branch L_gl")
        self.lab("L_gnb")
        A("s_add_u32 s66, s60, s72")
        A(f"s_and_b32 s66, s66, {SI-1}")
        A("s_cbranch_scc1 L_gl")
        for j in range(NP):
            A(f"s_load_dword s{80+j}, s[28:29], s{32+j} glc")
        A("s_waitcnt lgkmcnt(0)")
        C("a word without this launch's tag means that workgroup has not reported yet")
        for j in range(NP):
            A(f"s_sub_u32 s{80+j}, s{80+j}, s58")
            A(f"s_cmp_le_u32 s{80+j}, {64 // I + 1}")
            A(f"s_cselect_b32 s{80+j}, s{80+j}, 0")
        for j in range(1, NP):
            A(f"s_add_u32 s80, s80, s{80+j}")
        A(f"s_mul_i32 s80, s80, {32 * I // NP}")
        A("ds_read_b32 v12, v13")
        A("s_waitcnt lgkmcnt(0)")
        A("v_sub_u32 v12, s80, v12")
        A(f"v_mov_b32 v1, {p['masks'][0]:#x}")
        for th, m in zip(p["th"], p["masks"][1:]):
            A(f"v_cmp_le_i32 vcc, {th}, v12")
            A(f"v_mov_b32 v2, {m:#x}")
            A("s_nop 0")
            A("v_cndmask_b32 v1, v1, v2, vcc")
        A("ds_write_b32 v13, v1 offset:16")
        A("s_branch L_gl")
        self.lab("L_gx")

    def helper(self):
        A, C, p = self.A, self.C, self.p
        C("---------------- helper: 16 columns of q = x @ wq for both batches")
        A("s_setprio 3")
        A("s_and_b32 s66, s2, 7")
        A("s_lshr_b32 s67, s2, 5")
        A("s_lshl_b32 s67, s67, 3")
        A("s_or_b32 s66, s66, s67")
        A("s_lshl_b32 s66, s66, 2")
        A("s_bfe_u32 s67, s2, 0x20003")
        A("s_add_u32 s66, s66, s67")
        A("v_lshrrev_b32 v1, 1, v0")
        A("v_lshlrev_b32 v1, 13, v1")
        A("v_and_b32 v7, 1, v0")
        A("v_lshl_or_b32 v1, v7, 4, v1")
        A("s_lshl_b32 s67, s66, 5")
        A("v_add_u32 v1, s67, v1")
        A("v_lshlrev_b32 v2, 4, v0")
        A("s_waitcnt lgkmcnt(0)")
        A("s_load_dword s58, s[28:29], 0")
        self.srd(40, "s10", "s11", 448 * 8192)
        for i in range(14):
            self.dma(1, 40, i * 0x40000, L_WQ + i * 1024)
        self.srd(40, "s4", "s5", 1792)
        self.dma(2, 40, 0, L_X, "")
        self.dma(2, 40, 1024, L_X + 1024, "")
        if p["b0"]:
            A("s_barrier")
        self.srd(36, "s28", "s29", WS_USED)
        self.perm_consts()
        A("v_lshrrev_b32 v5, 2, v12")
        A("v_lshl_add_u32 v5, v13, 3, v5")
        A("v_and_b32 v6, 3, v12")
        A("v_lshlrev_b32 v3, 5, v5")
        A("v_lshl_or_b32 v3, v6, 3, v3")
        A(f"v_add_u32 v3, {L_WQ:#x}, v3")
        A("v_mul_u32_u24 v4, 896, v7")
        A("v_lshl_add_u32 v4, v13, 4, v4")
        A(f"v_add_u32 v4, {L_X:#x}, v4")
        A("v_lshlrev_b32 v8, 6, v7")
        A("v_lshl_or_b32 v8, v13, 4, v8")
        A("s_lshl_b32 s67, s66, 7")
        A(f"s_add_u32 s67, s67, {W_Q:#x}")
        A("v_add_u32 v8, s67, v8")
        A("s_lshl_b32 s67, s57, 12")
        A("s_lshl_b32 s71, s56, 6")
        A("s_add_u32 s67, s67, s71")
        A(f"s_add_u32 s67, s67, {W_Q:#x}")
        A("v_lshrrev_b32 v9, 2, v0")
        A("v_lshlrev_b32 v9, 7, v9")
        A("v_lshl_add_u32 v9, v6, 4, v9")
        A("v_add_u32 v9, s67, v9")
        A("v_lshlrev_b32 v10, 3, v0")
        A(f"v_add_u32 v10, {L_Q:#x}, v10")
        A("s_lshl_b32 s67, s57, 4")
        A("s_add_u32 s67, s67, s55")
        A("s_waitcnt lgkmcnt(0)")
        C("new epoch (odd, never equal to the old one) and the tag of this launch")
        A("s_add_u32 s76, s58, 2")
        A("s_or_b32 s76, s76, 1")
        A("s_mul_i32 s58, s76, 0x9E3779B1")
        A("s_waitcnt vmcnt(0)")
        self.stamp(1)
        XB, WA = 16, 72
        def qmm(k):
            c = "0" if k == 0 else "v[128:131]"
            A(f"v_mfma_f32_16x16x32_bf16 v[128:131], v[{WA+4*k}:{WA+4*k+3}], v[{XB+4*k}:{XB+4*k+3}], {c}")
        for s in range(14):
            A(f"ds_read_b128 v[{XB+4*s}:{XB+4*s+3}], v4 offset:{s*64}")
            A(f"ds_read_b64_tr_b16 v[{WA+4*s}:{WA+4*s+1}], v3 offset:{s*1024}")
            A(f"ds_read_b64_tr_b16 v[{WA+4*s+2}:{WA+4*s+3}], v3 offset:{s*1024+128}")
            if s >= 4:
                A("s_waitcnt lgkmcnt(12)")
                qmm(s - 4)
        for k in range(10, 14):
            A(f"s_waitcnt lgkmcnt({(13-k)*3})")
            qmm(k)
        self.nop(8)
        A("v_cvt_pk_bf16_f32 v132, v128, v129")
        A("v_cvt_pk_bf16_f32 v133, v130, v131")
        A("v_bitop3_b32 v134, v132, v133, s58 bitop3:0x96")
        A("v_mov_b32 v135, v134")
        A("s_mov_b32 s64, 0x00030003")
        A("s_mov_b32 s65, 0x00030003")
        A("s_mov_b64 exec, s[64:65]")
        A("buffer_store_dwordx4 v[132:135], v8, s[36:39], 0 offen sc1")
        A("s_mov_b64 exec, -1")
        self.stamp(2)

        def wo_dma(a, b, wait):
            self.srd(40, "s12", "s13", 4096 * 896)
            A("s_mul_i32 s68, s67, 28672")
            for i in range(a, b):
                self.dma(2, 40, ("s68", i * 1024), L_WO + i * 1024)
                if wait:
                    A("s_waitcnt vmcnt(0)")
        C("first rows of the wo slice, then collect this group's q")
        wo_dma(0, p["wo1"], True)
        self.poll([f"buffer_load_dwordx4 v[{136+4*i}:{139+4*i}], v9, s[36:39], 0 offen offset:{i*2048} sc1" for i in range(2)],
                  [[136, 137, 138], [140, 141, 142]], 144)
        A("ds_write_b64 v10, v[136:137]")
        A("ds_write_b64 v10, v[140:141] offset:512")
        A("v_mov_b32 v144, s58")
        A(f"v_mov_b32 v145, {L_TAG:#x}")
        A("ds_write_b32 v145, v144")
        A("s_waitcnt lgkmcnt(0)")
        self.stamp(3)
        A("s_barrier")
        C("---------------- FFN stage 1: 56 rows x 64 columns of w1 and w3 (224 workgroups)")
        A("s_and_b32 s68, s2, 7")
        A("s_lshr_b32 s69, s2, 6")
        A("s_lshl_b32 s69, s69, 3")
        A("s_add_u32 s68, s68, s69")
        A("s_cmp_ge_u32 s68, 28")
        A("s_cbranch_scc1 L_noffn")
        A("s_bfe_u32 s79, s2, 0x30003")
        A("s_lshl_b32 s77, s68, 3")
        A("s_add_u32 s77, s77, s79")
        A("v_lshrrev_b32 v8, 3, v0")
        A("v_mul_u32_u24 v1, 3584, v8")
        A("v_and_b32 v8, 7, v0")
        A("v_lshl_add_u32 v1, v8, 4, v1")
        A("s_lshl_b32 s68, s68, 7")
        A(f"s_mul_i32 s71, s79, {56*3584}")
        A("s_add_u32 s68, s68, s71")
        A("v_add_u32 v1, s68, v1")
        self.srd(40, "s16", "s17", 448 * 3584)
        self.srd(32, "s18", "s19", 448 * 3584)
        for i in range(7):
            self.dma(1, 40, i * 8 * 3584, L_W1 + i * 1024)
            self.dma(1, 32, i * 8 * 3584, L_W3 + i * 1024)
            A(f"s_waitcnt vmcnt({p['fpace']})")
        A("s_mul_i32 s68, s79, 112")
        A("v_add_u32 v8, s68, v4")
        A("v_add_u32 v9, 64, v8")
        A("s_mov_b32 s64, 0")
        A("s_mov_b32 s65, 0xffff0000")
        A(f"v_mov_b32 v10, {L_X+1792:#x}")
        A("v_cndmask_b32_e64 v9, v9, v10, s[64:65]")
        A("ds_read_b128 v[16:19], v8")
        A("ds_read_b128 v[20:23], v9")
        A("v_lshlrev_b32 v3, 7, v5")
        A("v_lshl_add_u32 v3, v6, 3, v3")
        A(f"v_add_u32 v3, {L_W1:#x}, v3")
        A("v_add_u32 v11, 4096, v3")
        A("v_add_u32 v10, 3072, v3")
        A("v_cndmask_b32_e64 v11, v11, v10, s[64:65]")
        A("s_waitcnt lgkmcnt(0)")
        for t in range(8):
            m16 = 3 << (2 * t)
            A(f"s_mov_b32 s64, {m16 | (m16 << 16):#x}")
            A(f"s_mov_b32 s65, {m16 | (m16 << 16):#x}")
            for i in range(8):
                A(f"v_cndmask_b32_e64 v{24+8*t+i}, 0, v{16+i}, s[64:65]")
        A("s_waitcnt vmcnt(0)")
        WB = 144
        for half in range(2):
            for tt in range(4):
                o, r = half * 7168 + tt * 32, WB + 8 * tt
                A(f"ds_read_b64_tr_b16 v[{r}:{r+1}], v3 offset:{o}")
                A(f"ds_read_b64_tr_b16 v[{r+2}:{r+3}], v3 offset:{o+512}")
                A(f"ds_read_b64_tr_b16 v[{r+4}:{r+5}], v11 offset:{o}")
                if tt == 3:
                    A("s_waitcnt lgkmcnt(0)")
                A(f"ds_read_b64_tr_b16 v[{r+6}:{r+7}], v11 offset:{o+512}")
            A("s_waitcnt lgkmcnt(0)")
            for tt in range(4):
                t, r = half * 4 + tt, WB + 8 * tt
                for st in range(2):
                    c = "0" if (t == 0 and st == 0) else "v[128:131]"
                    A(f"v_mfma_f32_16x16x32_bf16 v[128:131], v[{r+4*st}:{r+4*st+3}], v[{24+8*t+4*st}:{27+8*t+4*st}], {c}")
            self.nop(8)
        A("v_and_b32 v8, 7, v12")
        A("v_lshlrev_b32 v8, 7, v8")
        A("v_lshrrev_b32 v9, 3, v12")
        A("v_lshl_add_u32 v8, v9, 6, v8")
        A("v_lshl_add_u32 v8, v13, 4, v8")
        A("s_lshl_b32 s68, s77, 10")
        A(f"s_add_u32 s68, s68, {W_FP:#x}")
        A("v_add_u32 v8, s68, v8")
        self.pack4(140, 128)
        A("buffer_store_dwordx4 v[140:143], v8, s[36:39], 0 offen sc1")
        self.lab("L_noffn")
        C("---------------- gate g = sigmoid(sum(x*gate_w)) of this workgroup's batch")
        self.srd(40, "s22", "s23", 896)
        A("buffer_load_dwordx4 v[128:131], v2, s[40:43], 0 offen")
        A("s_mul_i32 s68, s56, 896")
        A(f"s_add_u32 s68, s68, {L_X:#x}")
        A("v_add_u32 v8, s68, v2")
        A("ds_read_b128 v[132:135], v8")
        C("zero window around the o operand")
        for i in range(4):
            A(f"v_mov_b32 v{148+i}, 0")
        A(f"v_add_u32 v9, {L_AZ:#x}, v2")
        A("ds_write_b128 v9, v[148:151]")
        A("ds_write_b128 v9, v[148:151] offset:1024")
        A("s_waitcnt vmcnt(0) lgkmcnt(0)")
        for d in range(4):
            A(f"v_lshlrev_b32 v136, 16, v{128+d}")
            A(f"v_and_b32 v137, s62, v{128+d}")
            A(f"v_lshlrev_b32 v138, 16, v{132+d}")
            A(f"v_and_b32 v139, s62, v{132+d}")
            A("v_mul_f32 v136, v136, v138")
            A("v_mul_f32 v137, v137, v139")
            A("v_cvt_pk_bf16_f32 v137, v136, v137")
            A("v_lshlrev_b32 v136, 16, v137")
            A("v_and_b32 v137, s62, v137")
            if d == 0:
                A("v_add_f32 v140, v136, v137")
            else:
                A("v_add_f32 v140, v140, v136")
                A("v_add_f32 v140, v140, v137")
        A("s_mov_b32 s64, -1")
        A("s_mov_b32 s65, 0x00ffffff")
        A("v_cndmask_b32_e64 v140, 0, v140, s[64:65]")
        self.row_allreduce("v_add_f32", [140])
        self.swap_allreduce("v_add_f32", [140], [141], 16)
        self.swap_allreduce("v_add_f32", [140], [141], 32)
        self.round_bf16(140)
        A(f"v_mul_f32 v140, {f2u(-LOG2E):#x}, v140")
        A("v_exp_f32 v140, v140")
        self.nop(1)
        A("v_add_f32 v140, 1.0, v140")
        A("v_rcp_f32 v14, v140")
        self.nop(1)
        self.round_bf16(14)
        A("v_sub_f32 v15, 1.0, v14")
        self.round_bf16(15)
        A(f"v_mov_b32 v8, {L_G:#x}")
        A("ds_write_b32 v8, v14")
        self.stamp(4)
        A("s_barrier")
        C("---------------- (max, sum) of the workgroup -> d_ws")
        SB = 232
        A("v_lshlrev_b32 v8, 3, v7")
        A(f"v_add_u32 v8, {L_ST:#x}, v8")
        for w in range(4):
            A(f"ds_read_b64 v[{SB+2*w}:{SB+1+2*w}], v8 offset:{w*16}")
        A("s_lshl_b32 s68, s54, 11")
        A(f"s_add_u32 s68, s68, {W_ST:#x}")
        A("s_lshl_b32 s69, s55, 7")
        A("s_add_u32 s69, s69, s68")
        A("v_add_u32 v9, s69, v2")
        A("v_bfe_u32 v11, v0, 1, 4")
        A("v_lshlrev_b32 v11, 7, v11")
        A("v_lshl_add_u32 v11, v7, 4, v11")
        A("v_add_u32 v11, s68, v11")
        A("s_waitcnt lgkmcnt(0)")
        A(f"v_max3_f32 v240, v{SB}, v{SB+2}, v{SB+4}")
        A(f"v_max_f32 v240, v240, v{SB+6}")
        for w in range(4):
            A(f"v_sub_f32 v{140+w}, v{SB+2*w}, v240")
        for w in range(4):
            A(f"v_exp_f32 v{140+w}, v{140+w}")
        self.nop(1)
        A(f"v_mul_f32 v241, v140, v{SB+1}")
        for w in range(1, 4):
            A(f"v_fmac_f32 v241, v{140+w}, v{SB+1+2*w}")
        A("v_bitop3_b32 v242, v240, v241, s58 bitop3:0x96")
        A("v_mov_b32 v243, v242")
        A("s_mov_b64 exec, 0xff")
        A("buffer_store_dwordx4 v[240:243], v9, s[36:39], 0 offen sc1")
        A("s_mov_b64 exec, -1")
        C("---------------- FFN stage 2: h = silu(gate)*up for 16 hidden columns, (1-g) * h @ w2 rows")
        DB = 200
        for t in range(7):
            A(f"v_mov_b32 v{DB+4*t}, 0")
        A("s_cmp_ge_u32 s67, 112")
        A("s_cbranch_scc1 L_noffn2")
        self.srd(40, "s20", "s21", 1792 * 896)
        A("s_mul_i32 s68, s67, 14336")
        for i in range(14):
            self.dma(2, 40, ("s68", i * 1024), L_W2 + i * 1024)
            A("s_waitcnt vmcnt(0)")
        A("v_lshrrev_b32 v9, 1, v12")
        A("v_lshlrev_b32 v9, 10, v9")
        A("v_lshl_add_u32 v9, v7, 6, v9")
        A("v_lshl_add_u32 v9, v13, 4, v9")
        A("s_lshr_b32 s68, s67, 2")
        A("s_lshl_b32 s68, s68, 13")
        A("s_and_b32 s69, s67, 3")
        A("s_lshl_b32 s69, s69, 8")
        A("s_add_u32 s68, s68, s69")
        A("s_lshl_b32 s69, s56, 7")
        A("s_add_u32 s68, s68, s69")
        A(f"s_add_u32 s68, s68, {W_FP:#x}")
        A("v_add_u32 v9, s68, v9")
        self.poll(["buffer_load_dwordx4 v[136:139], v9, s[36:39], 0 offen sc1"], [[136, 137, 138, 139]], 144, sleep=16)
        self.unpack4([136])
        self.row_allreduce("v_add_f32", [136, 137, 138, 139], steps=(8, 4, 2))
        A("v_lshrrev_b32 v8, 2, v0")
        A("v_mul_u32_u24 v3, 896, v8")
        A("v_lshl_add_u32 v3, v6, 3, v3")
        A(f"v_add_u32 v3, {L_W2:#x}, v3")
        for t in range(28):
            A(f"ds_read_b64_tr_b16 v[{144+2*t}:{145+2*t}], v3 offset:{t*32}")
            if t % 14 == 13:
                A("s_waitcnt lgkmcnt(0)")
        for i in range(4):
            self.round_bf16(136 + i)
        self.nop(2)
        for i in range(4):
            A(f"v_mov_b32_dpp v{128+i}, v{136+i} quad_perm:[0,0,2,2] row_mask:0xf bank_mask:0xf")
            A(f"v_mov_b32_dpp v{132+i}, v{136+i} quad_perm:[1,1,3,3] row_mask:0xf bank_mask:0xf")
        for i in range(4):
            A(f"v_mul_f32 v{136+i}, {f2u(-LOG2E):#x}, v{128+i}")
        for i in range(4):
            A(f"v_exp_f32 v{136+i}, v{136+i}")
        self.nop(1)
        for i in range(4):
            A(f"v_add_f32 v{136+i}, 1.0, v{136+i}")
        for i in range(4):
            A(f"v_rcp_f32 v{136+i}, v{136+i}")
        self.nop(1)
        for i in range(4):
            A(f"v_mul_f32 v{128+i}, v{128+i}, v{136+i}")
        for i in range(4):
            self.round_bf16(128 + i)
        for i in range(4):
            A(f"v_mul_f32 v{128+i}, v{128+i}, v{132+i}")
        A("v_cvt_pk_bf16_f32 v128, v128, v129")
        A("v_cvt_pk_bf16_f32 v129, v130, v131")
        for u in range(4):
            m16 = 0xf << (4 * u)
            A(f"s_mov_b32 s64, {m16 | (m16 << 16):#x}")
            A(f"s_mov_b32 s65, {m16 | (m16 << 16):#x}")
            A(f"v_cndmask_b32_e64 v{132+2*u}, 0, v128, s[64:65]")
            A(f"v_cndmask_b32_e64 v{133+2*u}, 0, v129, s[64:65]")
        self.nop(2)
        for u in range(4):
            for t in range(7):
                c = "0" if u == 0 else f"v[{DB+4*t}:{DB+4*t+3}]"
                tl = 7 * u + t
                A(f"v_mfma_f32_16x16x16_bf16 v[{DB+4*t}:{DB+4*t+3}], v[{132+2*u}:{133+2*u}], v[{144+2*tl}:{145+2*tl}], {c}")
        self.nop(8)
        for t in range(7):
            A(f"v_mul_f32 v{DB+4*t}, v15, v{DB+4*t}")
        self.lab("L_noffn2")
        A("v_mul_u32_u24 v8, 448, v13")
        A("v_lshl_add_u32 v8, v12, 2, v8")
        A(f"v_add_u32 v8, {L_BP:#x}, v8")
        for t in range(7):
            A(f"ds_write_b32 v8, v{DB+4*t} offset:{t*64}")
        C("---------------- once the V phase is well under way: global (max, sum) -> per-wave factors")
        A(f"v_mov_b32 v8, {L_PW:#x}")
        A(f"s_mov_b32 s70, {p['spin']:#x}")
        self.lab("L_wfl")
        A("s_sleep 16")
        A("ds_read_b32 v9, v8")
        A("s_waitcnt lgkmcnt(0)")
        A("v_readfirstlane_b32 s68, v9")
        A("s_sub_u32 s70, s70, 1")
        A("s_cmp_eq_u32 s70, 0")
        A("s_cbranch_scc1 L_wfd")
        A(f"s_cmp_lt_u32 s68, {(30 + 2 * p['flagit']) * 32}")
        A("s_cbranch_scc1 L_wfl")
        self.lab("L_wfd")
        self.poll(["buffer_load_dwordx4 v[144:147], v11, s[36:39], 0 offen sc1"], [[144, 145, 146]], 148, sleep=16)
        A("v_mov_b32 v148, v144")
        self.row_allreduce("v_max_f32", [148], steps=(8, 4, 2))
        self.swap_allreduce("v_max_f32", [148], [149], 16)
        A("v_sub_f32 v144, v144, v148")
        A("v_exp_f32 v144, v144")
        self.nop(1)
        A("v_mul_f32 v145, v145, v144")
        self.row_allreduce("v_add_f32", [145], steps=(8, 4, 2))
        self.swap_allreduce("v_add_f32", [145], [149], 16)
        A("v_rcp_f32 v145, v145")
        for w in range(4):
            A(f"v_sub_f32 v{140+w}, v{SB+2*w}, v148")
        for w in range(4):
            A(f"v_exp_f32 v{140+w}, v{140+w}")
        self.nop(1)
        for w in range(4):
            A(f"v_mul_f32 v{140+w}, v{140+w}, v145")
        A("v_lshlrev_b32 v8, 4, v7")
        A(f"v_add_u32 v8, {L_F:#x}, v8")
        A("s_mov_b64 exec, 3")
        A("ds_write_b128 v8, v[140:143]")
        A("s_mov_b64 exec, -1")
        C("tail addresses")
        self.consumer_id("s78", "s69")
        self.srd(32, "s24", "s25", 1792)
        A("s_lshl_b32 s69, s78, 5")
        A("s_mul_i32 s71, s56, 896")
        A("s_add_u32 s69, s69, s71")
        A("v_lshlrev_b32 v9, 1, v12")
        A("v_add_u32 v9, s69, v9")
        A("v_lshlrev_b32 v10, 4, v12")
        A(f"v_add_u32 v10, {L_FIN:#x}, v10")
        A("s_lshl_b32 s69, s54, 4")
        A("s_add_u32 s69, s69, s55")
        A("s_lshl_b32 s69, s69, 11")
        A(f"s_add_u32 s69, s69, {W_H1:#x}")
        A("v_lshlrev_b32 v16, 7, v12")
        A("v_lshl_or_b32 v16, v13, 5, v16")
        A("v_add_u32 v16, s69, v16")
        A("v_lshlrev_b32 v17, 5, v13")
        A("s_lshl_b32 s69, s55, 7")
        A(f"s_add_u32 s69, s69, {L_PART:#x}")
        A("v_add_u32 v17, s69, v17")
        A("s_lshr_b32 s69, s55, 3")
        A("s_lshl_b32 s69, s69, 4")
        A(f"s_add_u32 s69, s69, {L_F:#x}")
        A("v_mov_b32 v18, s69")
        A("v_lshlrev_b32 v19, 4, v13")
        A(f"v_add_u32 v19, {L_AZ + 6*64:#x}, v19")
        A("s_lshl_b32 s44, 0x10001, s55")
        A("s_not_b32 s44, s44")
        A("s_mov_b32 s45, s44")
        self.stamp(5)
        A("s_waitcnt lgkmcnt(0)")
        A("s_barrier")
        C("---------------- hop 1: gather the 16 partials of this workgroup's 32 o columns")
        X = 96
        for w in range(4):
            A(f"ds_read_b128 v[{200+8*w}:{203+8*w}], v17 offset:{w*2048}")
            A(f"ds_read_b128 v[{204+8*w}:{207+8*w}], v17 offset:{w*2048+16}")
        A("ds_read_b128 v[232:235], v18")
        A("s_barrier")
        wo_dma(p["wo1"], 28, False)
        l1 = [f"buffer_load_dwordx4 v[{X+4*i}:{X+4*i+3}], v16, s[36:39], 0 offen offset:{i*16} sc1" for i in range(2)]
        A("s_mov_b64 exec, s[44:45]")
        for l in l1:
            A(l)
        A("s_mov_b64 exec, -1")
        A("s_waitcnt lgkmcnt(0)")
        for i in range(4):
            a = 200 + 2 * i
            A(f"v_pk_mul_f32 v[{a}:{a+1}], v[{a}:{a+1}], v[232:233] op_sel:[0,0] op_sel_hi:[1,0]")
        for w in range(1, 4):
            for i in range(4):
                a, b, f, h = 200 + 2 * i, 200 + 8 * w + 2 * i, 232 + (w & 2), w & 1
                A(f"v_pk_fma_f32 v[{a}:{a+1}], v[{b}:{b+1}], v[{f}:{f+1}], v[{a}:{a+1}] op_sel:[0,{h},0] op_sel_hi:[1,{h},1]")
        A("s_mov_b64 exec, s[44:45]")
        self.poll(l1, [list(range(X + 4 * i, X + 4 * i + 4)) for i in range(2)], 112, pre=True)
        self.unpack4([X, X + 4])
        for e in range(8):
            A(f"v_cndmask_b32_e64 v{X+e}, v{200+e}, v{X+e}, s[44:45]")
        self.row_allreduce("v_add_f32", list(range(X, X + 8)))
        for i in range(4):
            A(f"v_cvt_pk_bf16_f32 v{116+i}, v{X+2*i}, v{X+2*i+1}")
        A("ds_write_b128 v19, v[116:119]")
        A("s_waitcnt lgkmcnt(0)")
        A("s_barrier")
        A("s_cmp_ge_u32 s78, 28")
        A("s_cbranch_scc1 L_hend")
        C("released when the streaming waves have left their sums in LDS and ended")
        A("s_barrier")
        self.tstamp(3)
        A("ds_read_b128 v[128:131], v10")
        A("s_waitcnt lgkmcnt(0)")
        A("v_add_f32 v128, v128, v129")
        A("v_add_f32 v130, v130, v131")
        A("v_add_f32 v128, v128, v130")
        self.stamp(6)
        self.tstamp(5)
        A("v_cvt_pk_bf16_f32 v128, v128, v128")
        A("s_mov_b64 exec, 0xffff")
        A("buffer_store_short v128, v9, s[32:35], 0 offen")
        A("s_or_b32 s68, s56, s78")
        A("s_cmp_lg_u32 s68, 0")
        A("s_cbranch_scc1 L_hend")
        C("every workgroup has read the epoch by now (this result depends on all of them)")
        A("s_mov_b64 exec, 1")
        A("v_mov_b32 v130, s76")
        A("v_mov_b32 v131, 0")
        A("buffer_store_dword v130, v131, s[36:39], 0 offen")
        self.lab("L_hend")
        self.write_stamps()


if __name__ == "__main__":
    out = sys.argv[1]
    kw = json.loads(sys.argv[2]) if len(sys.argv) > 2 else {}
    src = G(**kw).gen().replace("v34, s[36:39]", "v44, s[36:39]").replace("ds_write_b32 v35, v112", "ds_write_b32 v45, v112")
    open(out, "w").write(src)
```
